```python
import torch

def _softmax(x, axis=-1):
    return torch.softmax(x, dim=axis)
def _gelu(x):
    return torch.nn.functional.gelu(x, approximate="tanh")
def _silu(x):
    return torch.nn.functional.silu(x)
def _sigmoid(x):
    return torch.sigmoid(x)
def _layernorm(x, axis=-1, eps=1e-5):
    m = x.mean(dim=axis, keepdim=True)
    v = x.var(dim=axis, keepdim=True, unbiased=False)
    return (x - m) / torch.sqrt(v + eps)
def _scatter_add(tgt, idx, src, axis=0):
    return tgt.clone().index_add_(axis, idx, src)
def _segment_sum(src, seg, n):
    out = torch.zeros((n,) + src.shape[1:], dtype=src.dtype)
    return out.index_add_(0, seg, src)
def _pad(x, pw):
    flat = tuple(v for pair in reversed(pw) for v in pair)
    return torch.nn.functional.pad(x, flat)

kernel_name = 'concat_heads__ssm_conv_h3__grouped_kv_mqa__prompt'

def setup_inputs():

    _w = (lambda a: (lambda t: t.to(torch.bfloat16) if t.is_floating_point() else t)(torch.as_tensor(a)))
    def _A_setup():
        B, S, D = 1, 2048, 576
        ks = 4
        return {
            "q": _w((lambda *s: torch.randn(*s, dtype=torch.bfloat16) * 0.05)(B, S, D)),
            "k": _w((lambda *s: torch.randn(*s, dtype=torch.bfloat16) * 0.2)(B, S, D)),
            "v": _w((lambda *s: torch.randn(*s, dtype=torch.bfloat16) * 0.2)(B, S, D)),
            "shift_k": _w((lambda *s: torch.randn(*s, dtype=torch.bfloat16) * 0.2)(D, ks) * 0.5),
            "ssm_k": _w((lambda *s: torch.randn(*s, dtype=torch.bfloat16) * 0.8)(D, S) * (1.0 / S ** 0.5)),
            "ssm_D": _w((lambda *s: torch.randn(*s, dtype=torch.bfloat16) * 0.2)(D)),
        }
    _A_in = _A_setup()

    def _B_setup():
        B, S, D, H = 1, 2048, 576, 32
        Dh = D // H
        return {
            "x": _w((lambda *s: torch.randn(*s, dtype=torch.bfloat16) * 0.05)(B, S, D)),
            "wq": _w((lambda *s: torch.randn(*s, dtype=torch.bfloat16) * 0.8)(D, H * Dh)),
            "wk": _w((lambda *s: torch.randn(*s, dtype=torch.bfloat16) * 0.8)(D, Dh)),
            "wv": _w((lambda *s: torch.randn(*s, dtype=torch.bfloat16) * 0.05)(D, Dh)),
            "wo": _w((lambda *s: torch.randn(*s, dtype=torch.bfloat16) * 0.05)(H * Dh, D)),
        }
    _B_in = _B_setup()

    return {
        "A_q": _A_in["q"],
        "A_k": _A_in["k"],
        "A_v": _A_in["v"],
        "A_shift_k": _A_in["shift_k"],
        "A_ssm_k": _A_in["ssm_k"],
        "A_ssm_D": _A_in["ssm_D"],
        "B_x": _B_in["x"],
        "B_wq": _B_in["wq"],
        "B_wk": _B_in["wk"],
        "B_wv": _B_in["wv"],
        "B_wo": _B_in["wo"],
    }

def reference(A_q, A_k, A_v, A_shift_k, A_ssm_k, A_ssm_D, B_x, B_wq, B_wk, B_wv, B_wo):
    def _A_ref(q, k, v, shift_k, ssm_k, ssm_D):
        B, S, D = q.shape
        ks = shift_k.shape[-1]
        k_pad = _pad(k, ((0, 0), (ks - 1, 0), (0, 0)))
        k_shift = torch.zeros_like(k)
        for t in range(ks):
            k_shift = k_shift + k_pad[:, t:t + S, :] * shift_k[:, ks - 1 - t][None, None, :]
        kv = k_shift * v
        L = 2 * S
        kv_pad = _pad(kv, ((0, 0), (0, S), (0, 0)))
        kf_pad = _pad(ssm_k, ((0, 0), (0, S)))
        kv_f = (lambda x, axes=(-2,-1): torch.fft.rfft2(x.float(), dim=axes))(kv_pad[:, None, :, :], axes=(1, 2))
        kf_f = (lambda x, axes=(-2,-1): torch.fft.rfft2(x.float(), dim=axes))(kf_pad[:, None, :], axes=(1, 2))
        kf_f = (lambda x, *d: x.permute(*d))(kf_f, 1, 2, 0)
        y_f = kv_f * kf_f[None, :, :, :]
        y = (lambda x, s, axes=(-2,-1): torch.fft.irfft2(x, s=s, dim=axes).to(torch.bfloat16))(y_f, (1, L), axes=(1, 2))[:, 0, :S, :]
        y = y + kv * ssm_D[None, None, :]
        return q * y

    def _B_ref(x, wq, wk, wv, wo):
        B, S, D = x.shape
        H = 32
        Dh = D // H
        q = (lambda x, *d: x.permute(*d))((x @ wq).reshape(B, S, H, Dh), 0, 2, 1, 3)
        k = x @ wk
        v = x @ wv
        scores = torch.einsum("bhqd,bkd->bhqk", q, k) * (Dh ** -0.5)
        p = _softmax(scores, axis=-1)
        o = torch.einsum("bhqk,bkd->bhqd", p, v)
        return (lambda x, *d: x.permute(*d))(o, 0, 2, 1, 3).reshape(B, S, H * Dh) @ wo

    a = _A_ref(A_q, A_k, A_v, A_shift_k, A_ssm_k, A_ssm_D)
    b = _B_ref(B_x, B_wq, B_wk, B_wv, B_wo)
    return torch.concatenate([a, b], axis=-1)
```

```python
REC = 4736
class AR:
    X = 0;
def vr(b, n): return f"v[{b}:{b+n-1}]" if n > 1 else f"v{b}"

def attn_iter(R, cur, nxt, rec_off, waits=True, pv11_prev=True):
    L = []
    e = lambda i: L.append(f"v_exp_f32 v{cur+i}, v{cur+i}")
    w = lambda: L.append("s_waitcnt lgkmcnt(6)") if waits else None
    O, idx = R["O"], R["idx"]
    V = R["V"]; Km = R["Km"]; Kt = R["Kt"]; Qm = R["Qm"]; Qt = R["Qt"]
    aK, aT, aV = R["aK"], R["aT"], R["aV"]
    def pv(f, src, rec):
        w()
        L.append(f"v_smfmac_f32_32x32x32_bf16 {vr(O,16)}, {vr(V+4*f,4)}, {vr(src,8)}, v{idx}")
        L.append(f"ds_read_b128 {vr(V+4*f,4)}, v{aV} offset:{rec + 2304 + 608*f}")
    for i in (0, 1): e(i)
    if pv11_prev:
        pv(3, nxt + 24, rec_off)
    for i in range(2, 6): e(i)
    w()
    L.append(f"v_mfma_f32_32x32x4_2b_bf16 {vr(nxt,32)}, {vr(Kt,2)}, {vr(Qt,2)}, 0")
    L.append(f"ds_read_b32 v{Kt}, v{aT} offset:{rec_off + 2*REC + 2048}")
    for i in range(6, 14): e(i)
    pv(0, cur, rec_off + REC)
    for i in range(14, 18): e(i)
    pv(1, cur + 8, rec_off + REC)
    for i in range(18, 22): e(i)
    w()
    L.append(f"v_mfma_f32_32x32x16_bf16 {vr(nxt,16)}, {vr(Km,4)}, {vr(Qm,4)}, {vr(nxt,16)}")
    L.append(f"ds_read_b128 {vr(Km,4)}, v{aK} offset:{rec_off + 2*REC}")
    for i in range(22, 26): e(i)
    w()
    L.append(f"v_mfma_f32_32x32x16_bf16 {vr(nxt+16,16)}, {vr(Km+4,4)}, {vr(Qm,4)}, {vr(nxt+16,16)}")
    L.append(f"ds_read_b128 {vr(Km+4,4)}, v{aK} offset:{rec_off + 2*REC + 1024}")
    for i in range(26, 30): e(i)
    pv(2, cur + 16, rec_off + REC)
    for i in (30, 31): e(i)
    return L
```

```python
from gen import *

K2_GRID = 256; K2_BLOCK = 704; K2_LDS = 161280; K2_VGPR = 128
R = dict(O=72, idx=7, V=88, Km=104, Kt=112, Qm=116, Qt=114, aK=4, aT=5, aV=6)
SX, SY = 8, 40

def gen_k2(a):
    O, V, Km, Kt, Qm, Qt = R["O"], R["V"], R["Km"], R["Kt"], R["Qm"], R["Qt"]
    kernel_head(a, "k2_kernel")
    a(f"s_cmp_ge_u32 s2, {K2_GRID}", "s_cbranch_scc1 K2_END")
    a("s_load_dwordx2 s[4:5], s[0:1], 104", "s_load_dwordx2 s[6:7], s[0:1], 32")
    a("v_lshrrev_b32 v1, 6, v0", "v_and_b32 v2, 63, v0", "s_nop 0", "v_readfirstlane_b32 s18, v1")
    a("v_and_b32 v1, 31, v2", "v_lshrrev_b32 v3, 5, v2")
    a("s_cmp_ge_u32 s18, 8", "s_cbranch_scc1 K2_CONV")
    a("s_lshl_b32 s16, s2, 3", "s_add_u32 s16, s16, s18")
    a("s_mul_i32 s17, s16, 1152")
    a("v_mul_u32_u24 v120, 36, v1", "v_lshl_add_u32 v121, v3, 4, v120")
    a("v_lshlrev_b32 v4, 4, v2", "v_lshlrev_b32 v5, 2, v2")
    a("s_lshl_b32 m0, s18, 10")
    a("s_waitcnt lgkmcnt(0)")
    a.srd(24, 4, "s17", 1152)
    a.srd(28, 4, WS_KV, KV_BYTES + 256)
    a(f"buffer_load_dwordx4 {vr(Qm,4)}, v121, s[24:27], 0 offen",
      f"buffer_load_dword v{Qt}, v120, s[24:27], 0 offen offset:32",
      f"s_mov_b32 s20, {KV_BYTES}", "buffer_load_dword v122, v5, s[28:31], s20 offen")
    a(f"s_mov_b32 s30, {KV_BYTES}")
    for j in range(19):
        a("buffer_load_dwordx4 v4, s[28:31], m0 offen lds")
        if j < 18: a("s_add_u32 m0, m0, 8192", "s_nop 0")
    a("v_mov_b32 v6, 4", "v_cmp_gt_u32 vcc, 19, v1", "s_nop 1", "v_cndmask_b32 v6, v6, v1, vcc",
      "v_subrev_u32 v123, 20, v1", "v_cmp_gt_u32 vcc, 8, v123", "s_nop 1", "v_cndmask_b32 v6, v6, 0, vcc",
      "v_lshlrev_b32 v6, 4, v6", "v_mul_u32_u24 v123, 304, v3", "v_add_u32 v6, v6, v123")
    a("v_mov_b32 v7, 0xdddddddd", f"v_mov_b32 v{Kt+1}, 0x3f80")
    for i in range(16): a(f"v_mov_b32 v{O+i}, 0")
    a("s_waitcnt vmcnt(19)")
    a("v_cmp_eq_u32 vcc, 0, v3", "v_mov_b32 v123, 0", "s_nop 0", f"v_cndmask_b32 v124, 0, v{Qt}, vcc")
    for r in [Qm, Qm + 1, Qm + 2, Qm + 3, 124]:
        a(f"v_dot2_f32_bf16 v123, v{r}, v{r}, v123")
    for sh in (8, 4, 2, 1):
        a(f"v_max_u32_dpp v122, v122, v122 row_ror:{sh} row_mask:0xf bank_mask:0xf", "s_nop 1")
    a("v_mov_b32 v124, v123", "v_readlane_b32 s20, v122, 0", "v_readlane_b32 s21, v122, 16",
      "v_permlane32_swap_b32 v123, v124", "v_readlane_b32 s22, v122, 32", "v_readlane_b32 s23, v122, 48",
      "s_max_u32 s20, s20, s21", "s_max_u32 s22, s22, s23", "s_max_u32 s20, s20, s22",
      "v_add_f32 v123, v123, v124", "v_mul_f32 v123, s20, v123", "v_sqrt_f32 v123, v123", "s_nop 0",
      f"v_mul_f32 v123, {f32bits(1.01)}, v123",
      f"s_mov_b32 s21, {f32bits(32.0)}", "v_cmp_nge_f32 vcc, s21, v123",
      f"v_cvt_pk_bf16_f32 v{Qt+1}, -v123, 0",
      "s_cmp_lg_u64 vcc, 0", "s_cbranch_scc1 K2_SLOW")
    a("s_waitcnt vmcnt(16)", "s_barrier")
    a(f"ds_read_b32 v{Kt}, v5 offset:2048", f"ds_read_b128 {vr(Km,4)}, v4", f"ds_read_b128 {vr(Km+4,4)}, v4 offset:1024")
    for f in range(4): a(f"ds_read_b128 {vr(V+4*f,4)}, v6 offset:{2304 + 608*f}")
    a("s_waitcnt lgkmcnt(4)")
    a(mfma(SX, Km, Qm, "0"), mfma(SX + 16, Km + 4, Qm, "0"))
    a(f"ds_read_b128 {vr(Km,4)}, v4 offset:{REC}", f"ds_read_b128 {vr(Km+4,4)}, v4 offset:{REC + 1024}")
    a.nop(8)
    a(f"v_mfma_f32_32x32x4_2b_bf16 {vr(SX,32)}, {vr(Kt,2)}, {vr(Qt,2)}, {vr(SX,32)}")
    a(f"ds_read_b32 v{Kt}, v5 offset:{REC + 2048}")
    a.nop(18)
    a("s_waitcnt lgkmcnt(0)")
    for r in range(4):
        if r == 3: a("s_waitcnt vmcnt(11)", "s_barrier")
        a(attn_iter(R, SX if r % 2 == 0 else SY, SY if r % 2 == 0 else SX, r * REC, pv11_prev=(r > 0)))
    a("s_mov_b32 s20, 1")
    a(".p2align 6")
    a.label("K2_LOOP")
    a(f"v_add_u32 v4, {4*REC}, v4", f"v_add_u32 v5, {4*REC}, v5", f"v_add_u32 v6, {4*REC}, v6")
    a("s_cmp_lg_u32 s20, 2", "s_cbranch_scc1 K2_NOBAR", "s_waitcnt vmcnt(0)", "s_barrier")
    a.label("K2_NOBAR")
    for r in range(4):
        a(attn_iter(R, SX if r % 2 == 0 else SY, SY if r % 2 == 0 else SX, r * REC))
    a("s_add_u32 s20, s20, 1", "s_cmp_lt_u32 s20, 8", "s_cbranch_scc1 K2_LOOP")
    a("s_waitcnt lgkmcnt(0)")
    a(f"v_smfmac_f32_32x32x32_bf16 {vr(O,16)}, {vr(V+12,4)}, {vr(SY+24,8)}, v7")
    a.label("K2_FIN")
    a("s_lshr_b32 s20, s16, 5", "s_mul_i32 s20, s20, 36864", "s_and_b32 s21, s16, 31", "s_lshl_b32 s21, s21, 4",
      "s_add_u32 s20, s20, s21", f"s_add_u32 s20, s20, {WS_O}", "s_sub_u32 s21, 36864, s21")
    a.srd(24, 4, "s20", "s21")
    a("v_lshlrev_b32 v4, 10, v1", "v_lshl_add_u32 v4, v3, 9, v4")
    a("v_lshrrev_b32 v5, 2, v1", "v_lshlrev_b32 v5, 9, v5", "v_and_b32 v6, 3, v1", "v_lshl_add_u32 v5, v6, 2, v5", "v_add_u32 v5, 0x8000, v5")
    a(f"v_mov_b32 v8, v{O+10}", f"v_mov_b32 v9, v{O+10}", "s_nop 1", "v_permlane32_swap_b32 v8, v9", "s_nop 1", "v_rcp_f32 v8, v8", "s_nop 0")
    for i in range(10): a(f"v_mul_f32 v{O+i}, v8, v{O+i}")
    for i in range(5): a(f"v_cvt_pk_bf16_f32 v{12+i}, v{O+2*i}, v{O+2*i+1}")
    a("buffer_store_dwordx4 v[12:15], v4, s[24:27], 0 offen", "s_mov_b32 exec_lo, -1", "s_mov_b32 exec_hi, 0", "buffer_store_dword v16, v5, s[24:27], 0 offen")
    a("s_endpgm")
    a.label("K2_SLOW")
    a("s_waitcnt vmcnt(0)", "s_barrier", "s_barrier", "s_barrier")
    a(f"v_mov_b32 v{Qt+1}, 0", "v_mov_b32 v123, 0xff800000", "v_mov_b32 v120, v4", "v_mov_b32 v121, v5")
    def qk_slow():
        a(f"ds_read_b32 v{Kt}, v121 offset:2048", f"ds_read_b128 {vr(Km,4)}, v120", f"ds_read_b128 {vr(Km+4,4)}, v120 offset:1024")
        a("s_waitcnt lgkmcnt(0)")
        a(mfma(SX, Km, Qm, "0"), mfma(SX + 16, Km + 4, Qm, "0"))
        a.nop(10)
        a(f"v_mfma_f32_32x32x4_2b_bf16 {vr(SX,32)}, {vr(Kt,2)}, {vr(Qt,2)}, {vr(SX,32)}")
        a(f"v_add_u32 v120, {REC}, v120", f"v_add_u32 v121, {REC}, v121")
        a.nop(20)
    a("s_mov_b32 s20, 0")
    a.label("K2_SLOW1")
    qk_slow()
    for i in range(16): a(f"v_max3_f32 v123, v123, v{SX+2*i}, v{SX+2*i+1}")
    a("s_add_u32 s20, s20, 1", "s_cmp_lt_u32 s20, 32", "s_cbranch_scc1 K2_SLOW1")
    a("v_mov_b32 v124, v123", "s_nop 1", "v_permlane32_swap_b32 v123, v124", "s_nop 1", "v_max_f32 v123, v123, v124")
    a("v_mov_b32 v120, v4", "v_mov_b32 v121, v5", "s_mov_b32 s20, 0")
    a.label("K2_SLOW2")
    for f in range(4): a(f"ds_read_b128 {vr(V+4*f,4)}, v6 offset:{2304 + 608*f}")
    qk_slow()
    a(f"v_add_u32 v6, {REC}, v6")
    for i in range(32): a(f"v_sub_f32 v{SX+i}, v{SX+i}, v123")
    for i in range(32): a(f"v_exp_f32 v{SX+i}, v{SX+i}")
    a("s_nop 1")
    for f in range(4): a(f"v_smfmac_f32_32x32x32_bf16 {vr(O,16)}, {vr(V+4*f,4)}, {vr(SX+8*f,8)}, v7")
    a("s_nop 7")
    a("s_add_u32 s20, s20, 1", "s_cmp_lt_u32 s20, 32", "s_cbranch_scc1 K2_SLOW2")
    a("s_branch K2_FIN")
    a.label("K2_CONV")
    a("s_sub_u32 s18, s18, 8", "s_lshl_b32 s18, s18, 5", "s_lshr_b32 s19, s2, 3", "s_add_u32 s18, s18, s19",
      "s_cmp_ge_u32 s18, 72", "s_cbranch_scc1 K2_END",
      "s_and_b32 s19, s2, 7", "s_mul_i32 s19, s19, 72", "s_add_u32 s18, s18, s19")
    a("v_lshrrev_b32 v4, 2, v1", "v_lshlrev_b32 v4, 5, v4", "v_and_b32 v5, 3, v1", "v_lshl_add_u32 v4, v5, 2, v4", "v_lshl_add_u32 v4, v3, 4, v4",
      "v_add_u32 v5, 20, v4")
    a("v_lshrrev_b32 v6, 2, v1", "v_lshlrev_b32 v6, 4, v6", "v_bfe_u32 v7, v1, 1, 1", "v_add_u32 v6, v6, v7", "v_sub_u32 v6, 113, v6",
      "v_add_u32 v6, v6, v3", "v_lshlrev_b32 v6, 5, v6", "v_and_b32 v7, 1, v1", "v_lshl_add_u32 v6, v7, 4, v6", "v_add_u32 v7, 0x1000, v6")
    a("s_lshl_b32 s19, s18, 12", "s_lshl_b32 s20, s18, 9", f"s_add_u32 s20, s20, {WS_HP}", "s_lshl_b32 s21, s18, 13", f"s_add_u32 s21, s21, {WS_XI}")
    a("s_waitcnt lgkmcnt(0)")
    a.srd(24, 6, "s19", 4096); a.srd(28, 4, "s20", 512); a.srd(32, 4, "s21", 8192)
    Y0, Y1, FB, D = 8, 24, 40, 4
    def loads(i):
        b = FB + 16 * (i % D)
        L = [f"buffer_load_dwordx4 {vr(b,4)}, v4, s[28:31], 0 offen offset:{32*i}" if i < 8 else
             f"buffer_load_dwordx4 {vr(b,4)}, v5, s[24:27], 0 offen offset:{32*(i-8)}",
             f"buffer_load_dwordx4 {vr(b+4,4)}, v6, s[32:35], 0 offen offset:{64*i}",
             f"buffer_load_dwordx4 {vr(b+8,4)}, v7, s[32:35], 0 offen offset:{64*i}",
             f"buffer_load_dwordx4 {vr(b+12,4)}, v5, s[24:27], 0 offen offset:{32*i+1792}"]
        return L
    for i in range(D): a(loads(i))
    a("s_barrier")
    for i in range(64):
        if i in (2, 10): a("s_barrier")
        b = FB + 16 * (i % D)
        a(f"s_waitcnt vmcnt({4 * min(D - 1, 63 - i)})")
        a(mfma(Y1, b, b + 4, "0" if i == 0 else None), mfma(Y0, b, b + 8, "0" if i == 0 else None), mfma(Y1, b + 12, b + 8))
        if i + D < 64: a(loads(i + D))
    a("s_lshr_b32 s19, s18, 3", "s_lshl_b32 s19, s19, 15", "s_and_b32 s20, s18, 7", "s_lshl_b32 s20, s20, 4", "s_add_u32 s19, s19, s20",
      f"s_add_u32 s19, s19, {WS_Y}", "s_sub_u32 s20, 32768, s20")
    a.srd(24, 4, "s19", "s20")
    a("v_lshlrev_b32 v4, 7, v2")
    a.nop(4)
    for i in range(16): a(f"v_cvt_pk_bf16_f32 v{FB+i}, v{Y0+2*i}, v{Y0+2*i+1}")
    for i in range(4): a(f"s_mov_b32 s19, {8192*i}", f"buffer_store_dwordx4 {vr(FB+4*i,4)}, v4, s[24:27], s19 offen")
    a.label("K2_END")
    a("s_endpgm")

K3_NG = 144; K3_NE = 96; K3_GRID = K3_NG + K3_NE; K3_LDS = 73728; K3_VGPR = 224

def gen_k3(a):
    kernel_head(a, "k3_kernel")
    a(f"s_cmp_ge_u32 s2, {K3_GRID}", "s_cbranch_scc1 K3_END")
    a("s_load_dwordx2 s[4:5], s[0:1], 104", "s_load_dwordx4 s[8:11], s[0:1], 80", "s_load_dwordx2 s[6:7], s[0:1], 0")
    a("v_lshrrev_b32 v1, 6, v0", "v_and_b32 v2, 63, v0", "s_nop 0", "v_readfirstlane_b32 s18, v1")
    a("v_and_b32 v12, 31, v2", "v_lshrrev_b32 v13, 5, v2")
    a(f"s_cmp_ge_u32 s2, {K3_NG}", "s_cbranch_scc1 K3_EPI")
    a("s_and_b32 s16, s2, 7", "s_lshr_b32 s17, s2, 3", "s_cmp_ge_u32 s17, 9", "s_cselect_b32 s19, 1, 0",
      "s_mul_i32 s20, s19, 9", "s_sub_u32 s17, s17, s20", "s_lshl_b32 s16, s16, 1", "s_add_u32 s16, s16, s19")
    a("s_lshl_b32 s20, s16, 2", "s_add_u32 s20, s20, s18", "s_mul_i32 s21, s20, 36864", f"s_add_u32 s21, s21, {WS_O}")
    a("v_lshlrev_b32 v3, 4, v2")
    a("v_lshrrev_b32 v5, 3, v2", "v_and_b32 v6, 7, v2", "v_bfe_u32 v7, v2, 4, 1", "v_lshlrev_b32 v7, 1, v7", "v_xor_b32 v7, v6, v7", "v_lshlrev_b32 v7, 4, v7",
      "v_mul_u32_u24 v14, 1152, v5", "v_add_u32 v14, v14, v7", f"s_mul_i32 s22, s18, {18*1152}", "v_add_u32 v14, s22, v14",
      "v_lshrrev_b32 v6, 1, v5", "v_mul_u32_u24 v6, 18, v6", "v_and_b32 v5, 1, v5", "v_add_u32 v6, v6, v5", "v_mul_u32_u24 v15, 1152, v6",
      "v_add_u32 v15, v15, v7", f"s_mul_i32 s22, s18, {144*1152}", "v_add_u32 v15, s22, v15", "s_lshl_b32 s23, s18, 11")
    a("s_lshl_b32 s19, s17, 7", f"s_sub_u32 s22, {576*1152}, s19")
    a("s_waitcnt lgkmcnt(0)")
    a.srd(24, 4, "s21", 36864)
    a.srd(28, 8, "s19", "s22")
    OF = 80; ACC = 32; FR = 64
    for c in range(9):
        for e in range(2):
            so = (72 * c + 8 * e) * 1152 if c < 8 else (72 * e + 16) * 1152
            a(f"s_add_u32 m0, s23, {(8*c+e)*1024}", f"s_mov_b32 s22, {so}", f"buffer_load_dwordx4 v{14 if c < 8 else 15}, s[28:31], s22 offen lds")
        a(f"s_mov_b32 s22, {c*4096}")
        for j in range(4): a(f"buffer_load_dwordx4 {vr(OF+16*c+4*j,4)}, v3, s[24:27], s22 offen offset:{1024*j}")
    w_tr_addr(a, 16, 2, 5, 6, 7)
    reads = lambda ks, s: w_tr_read(FR + 8 * s, 16, ks, 0) + w_tr_read(FR + 8 * s + 4, 16, ks, 1)
    for c in range(9):
        a(f"s_waitcnt vmcnt({6 * (8 - c)})", "s_barrier")
        a(reads(4 * c, 0))
        for j in range(4):
            ks = 4 * c + j
            if j < 3: a(reads(ks + 1, (j + 1) & 1), "s_waitcnt lgkmcnt(4)")
            else: a("s_waitcnt lgkmcnt(0)")
            b = FR + 8 * (j & 1)
            a(mfma(ACC, b, OF + 4 * ks, "0" if ks == 0 else None), mfma(ACC + 16, b + 4, OF + 4 * ks, "0" if ks == 0 else None))
    a(f"s_mul_i32 s21, s20, {32*2304}", "s_add_u32 s21, s21, s19", "s_add_u32 s21, s21, 1152")
    a.srd(24, 10, "s21", 31 * 2304 + 128)
    a("v_mul_u32_u24 v5, 2304, v12", "v_lshl_add_u32 v5, v13, 6, v5")
    a.nop(8)
    for i in range(16): a(f"v_cvt_pk_bf16_f32 v{FR+i}, v{ACC+2*i}, v{ACC+2*i+1}")
    for i in range(4): a(f"buffer_store_dwordx4 {vr(FR+4*i,4)}, v5, s[24:27], 0 offen offset:{16*i}")
    a("s_endpgm")
    a.label("K3_EPI")
    a(f"s_sub_u32 s16, s2, {K3_NG}", "s_lshl_b32 s16, s16, 2", "s_add_u32 s16, s16, s18")
    a("s_mul_hi_u32 s17, s16, 0x55555556", "s_mul_i32 s19, s17, 3", "s_sub_u32 s16, s16, s19")
    a("s_bfe_u32 s19, s17, 0x10006", "s_lshl_b32 s20, s19, 10",
      "s_bfe_u32 s19, s17, 0x30001", "s_lshl_b32 s19, s19, 7", "s_add_u32 s20, s20, s19",
      "s_bfe_u32 s19, s17, 0x10005", "s_lshl_b32 s19, s19, 6", "s_add_u32 s20, s20, s19",
      "s_bfe_u32 s19, s17, 0x10004", "s_lshl_b32 s19, s19, 4", "s_add_u32 s20, s20, s19",
      "s_and_b32 s19, s17, 1", "s_lshl_b32 s19, s19, 3", "s_add_u32 s20, s20, s19")
    a("s_mul_i32 s19, s16, 384")
    a("s_mul_i32 s21, s20, 1152", "s_add_u32 s21, s21, s19", "s_mul_i32 s22, s20, 2304", "s_add_u32 s22, s22, s19")
    a("v_mul_u32_u24 v3, 1152, v13", "v_lshl_add_u32 v3, v12, 2, v3", "v_add_u32 v3, s21, v3")
    a("v_mul_u32_u24 v4, 2304, v13", "v_lshl_add_u32 v4, v12, 2, v4", "v_add_u32 v4, s22, v4")
    a(f"s_mul_i32 s19, s16, {24*32768}", "s_lshl_b32 s21, s17, 8", "s_add_u32 s19, s19, s21",
      "v_lshrrev_b32 v5, 2, v12", "v_lshlrev_b32 v5, 15, v5", "v_and_b32 v6, 3, v12", "v_lshl_add_u32 v5, v6, 5, v5", "v_lshl_add_u32 v5, v13, 7, v5",
      "v_add_u32 v5, s19, v5")
    a("s_waitcnt lgkmcnt(0)")
    a.srd(24, 4, WS_Y, 2359296); a.srd(28, 6, 0, 2359296); a.srd(32, 10, 0, 4718592)
    rows = [0, 2, 4, 6, 32, 34, 36, 38]
    for i in range(3):
        b = 16 + 16 * i
        a(f"s_mov_b32 s19, {i*8*32768}", f"buffer_load_dwordx4 {vr(b,4)}, v5, s[24:27], s19 offen", f"buffer_load_dwordx4 {vr(b+4,4)}, v5, s[24:27], s19 offen offset:16")
        for j, r in enumerate(rows):
            a(f"s_mov_b32 s19, {r*1152}", f"buffer_load_dword v{b+8+j}, v3, s[28:31], s19 offen offset:{128*i}")
    a("s_mov_b32 s20, 0xffff0000")
    for i in range(3):
        b = 16 + 16 * i
        a(f"s_waitcnt vmcnt({10*(2-i) + 8*i})")
        for j, r in enumerate(rows):
            t = 64 + 6 * (j & 1)
            for e in range(2):
                src = b + 4 * e + (j >> 1)
                a(f"v_lshlrev_b32 v{t+e}, 16, v{src}" if j % 2 == 0 else f"v_and_b32 v{t+e}, s20, v{src}")
            a(f"v_lshlrev_b32 v{t+2}, 16, v{b+8+j}", f"v_and_b32 v{t+3}, s20, v{b+8+j}",
              f"v_pk_mul_f32 {vr(t,2)}, {vr(t,2)}, {vr(t+2,2)}", f"v_cvt_pk_bf16_f32 v{b+8+j}, v{t}, v{t+1}",
              f"s_mov_b32 s19, {r*2304}", f"buffer_store_dword v{b+8+j}, v4, s[32:35], s19 offen offset:{128*i}")
    a.label("K3_END")
    a("s_endpgm")
```

```python
import sys, math, struct
from attn_core import attn_iter, REC, vr

NAME = "concat_heads__ssm_conv_h3__grouped_kv_mqa__prompt"
WS_Q    = 0x000000
WS_KV   = 0x240000
WS_KMAX = 0x265000
WS_HP   = 0x270000
WS_XI   = 0x300000
WS_O    = 0x780000
WS_Y    = 0x9C0000
KV_BYTES = 32 * REC
KA = dict(q=0, k=8, v=16, shk=24, ssk=32, ssd=40, x=48, wq=56, wk=64, wv=72, wo=80, out=88, dbg=96, ws=104)

def f32bits(x): return struct.unpack("<I", struct.pack("<f", x))[0]
QSCALE = math.log2(math.e) / math.sqrt(18.0)

class A:
    def __init__(s): s.L = []
    def __call__(s, *lines):
        for l in lines:
            if isinstance(l, (list, tuple)): s.L.extend(l)
            else: s.L.append(l)
    def label(s, n): s.L.append(f"{n}:")
    def nop(s, n):
        while n > 0:
            k = min(n, 16); s.L.append(f"s_nop {k-1}"); n -= k
    def srd(s, d, base, off, nrec):
        if off is None or off == 0:
            s(f"s_mov_b32 s{d}, s{base}", f"s_mov_b32 s{d+1}, s{base+1}")
        else:
            s(f"s_add_u32 s{d}, s{base}, {off}", f"s_addc_u32 s{d+1}, s{base+1}, 0")
        s(f"s_mov_b32 s{d+2}, {nrec}", f"s_mov_b32 s{d+3}, 0x20000")

def kernel_head(a, name):
    a(f".globl {name}", ".p2align 8", f".type {name},@function", f"{name}:")

def kd(name, vgpr, sgpr=96):
    return [".p2align 6", f".amdhsa_kernel {name}", f"  .amdhsa_next_free_vgpr {vgpr}", f"  .amdhsa_next_free_sgpr {sgpr}",
            f"  .amdhsa_accum_offset {(vgpr + 3) // 4 * 4}", "  .amdhsa_group_segment_fixed_size 0", "  .amdhsa_kernarg_size 112",
            "  .amdhsa_user_sgpr_count 2", "  .amdhsa_user_sgpr_kernarg_segment_ptr 1", "  .amdhsa_system_sgpr_workgroup_id_x 1",
            "  .amdhsa_float_denorm_mode_32 3", ".end_amdhsa_kernel"]

def mfma(d, x, y, c=None):
    c = vr(d, 16) if c is None else c
    return f"v_mfma_f32_32x32x16_bf16 {vr(d,16)}, {vr(x,4)}, {vr(y,4)}, {c}"

def swap23(a, dst, src, t):
    a(f"v_and_b32 v{dst}, 0x13, v{src}",
      f"v_and_b32 v{t}, 4, v{src}", f"v_lshl_or_b32 v{dst}, v{t}, 1, v{dst}",
      f"v_and_b32 v{t}, 8, v{src}", f"v_lshrrev_b32 v{t}, 1, v{t}", f"v_or_b32 v{dst}, v{dst}, v{t}")

K1_NG = 160; K1_NP = 72; K1_GRID = K1_NG + K1_NP
K1_XR = 86016
K1_LDS = K1_XR + 4 * 16384

def w_tr_addr(a, dst0, lane, t0, t1, t2):
    a(f"v_lshrrev_b32 v{t0}, 5, v{lane}",
      f"v_lshlrev_b32 v{dst0}, 10, v{t0}",
      f"v_bfe_u32 v{t0}, v{lane}, 2, 2",
      f"v_lshl_add_u32 v{dst0}, v{t0}, 7, v{dst0}",
      f"v_lshrrev_b32 v{t0}, 1, v{t0}",
      f"v_lshl_add_u32 v{dst0}, v{t0}, 5, v{dst0}",
      f"v_and_b32 v{t0}, 1, v{lane}",
      f"v_lshl_add_u32 v{dst0}, v{t0}, 6, v{dst0}",
      f"v_bfe_u32 v{t0}, v{lane}, 4, 1",
      f"v_lshl_add_u32 v{dst0}, v{t0}, 4, v{dst0}",
      f"v_bfe_u32 v{t0}, v{lane}, 1, 1",
      f"v_lshl_add_u32 v{dst0}, v{t0}, 3, v{dst0}",
      f"v_xor_b32 v{dst0+1}, 32, v{dst0}",
      f"v_add_u32 v{dst0+2}, 0x8000, v{dst0}",
      f"v_add_u32 v{dst0+3}, 0x8000, v{dst0+1}")

def w_tr_read(dst, adr0, ks, t):
    hi = 1 if ks >= 16 else 0
    off = (ks - 16 * hi) * 2048
    ar = adr0 + 2 * hi + t
    return [f"ds_read_b64_tr_b16 {vr(dst,2)}, v{ar} offset:{off}", f"ds_read_b64_tr_b16 {vr(dst+2,2)}, v{ar} offset:{off+512}"]

def gen_k1(a):
    kernel_head(a, "k1_kernel")
    a(f"s_cmp_ge_u32 s2, {K1_GRID}", "s_cbranch_scc1 K1_END")
    a("s_load_dwordx2 s[4:5], s[0:1], 104")
    a(f"s_cmp_ge_u32 s2, {K1_NG}", "s_cbranch_scc1 K1_PREP")
    a("s_load_dwordx4 s[8:11], s[0:1], 48")
    a("s_load_dwordx4 s[12:15], s[0:1], 64")
    a("s_and_b32 s16, s2, 7", "s_lshr_b32 s17, s2, 3",
      "s_cmp_ge_u32 s17, 10", "s_cselect_b32 s18, 1, 0",
      "s_mul_i32 s19, s18, 10", "s_sub_u32 s17, s17, s19",
      "s_lshl_b32 s16, s16, 1", "s_add_u32 s16, s16, s18")
    a("v_lshrrev_b32 v1, 6, v0", "v_and_b32 v2, 63, v0", "s_nop 0", "v_readfirstlane_b32 s18, v1")
    a("v_lshrrev_b32 v5, 3, v2", "v_mul_u32_u24 v3, 1152, v5",
      "v_and_b32 v6, 7, v2", "v_lshrrev_b32 v7, 4, v2", "v_xor_b32 v7, v6, v7",
      "v_lshl_add_u32 v3, v7, 4, v3", "v_xor_b32 v4, 64, v3")
    a("v_and_b32 v12, 31, v2", "v_lshrrev_b32 v13, 5, v2",
      "v_bfe_u32 v7, v12, 1, 3", "v_xor_b32 v7, v7, v13", "v_lshlrev_b32 v8, 4, v7", "v_lshl_add_u32 v8, v12, 7, v8",
      "s_lshl_b32 s19, s18, 14", f"s_add_u32 s19, s19, {K1_XR}",
      "v_add_u32 v8, s19, v8", "v_xor_b32 v9, 32, v8", "v_xor_b32 v10, 64, v8", "v_xor_b32 v11, 96, v8")
    a("s_lshl_b32 s20, s16, 2", "s_add_u32 s20, s20, s18", "s_mul_i32 s21, s20, 36864")
    a("s_waitcnt lgkmcnt(0)")
    a.srd(24, 8, "s21", 36864)
    a("s_cmp_eq_u32 s17, 9", "s_cbranch_scc1 K1_KV")

    def xdma(c):
        L = []
        for q in range(4):
            L += [f"s_add_u32 m0, s19, {(c % 4) * 4096 + q * 1024}", f"s_mov_b32 s22, {q * 9216 + c * 128}",
                  f"buffer_load_dwordx4 v{3 + (q & 1)}, s[24:27], s22 offen lds"]
        return L

    def gemm_loop(wdma_counts, wdma, kstep_reads, kstep_mfma, nreads):
        order = []
        wi = 0
        for c in range(4):
            for _ in range(wdma_counts[c]):
                a(wdma(wi)); wi += 1; order.append(("w", c))
            a(xdma(c)); order += [("x", c)] * 4
        for _ in range(wdma_counts[4]):
            a(wdma(wi)); wi += 1; order.append(("w", 4))
        for c in range(9):
            need = max(i for i, (k, cc) in enumerate(order) if cc <= c)
            a(f"s_waitcnt vmcnt({len(order) - 1 - need})")
            if c <= 4: a("s_barrier")
            a(kstep_reads(4 * c, 0))
            for j in range(4):
                if j < 3:
                    a(kstep_reads(4 * c + j + 1, (j + 1) & 1))
                    a(f"s_waitcnt lgkmcnt({nreads})")
                else:
                    a("s_waitcnt lgkmcnt(0)")
                    if c + 4 < 9:
                        a(xdma(c + 4)); order += [("x", c + 4)] * 4
                a(kstep_mfma(4 * c + j, j & 1))

    ACC = 32; FR = 64
    def xread(ks, s):
        return [f"ds_read_b128 {vr(FR + 12 * s, 4)}, v{8 + (ks & 3)} offset:{((ks >> 2) & 3) * 4096}"]
    a("s_lshl_b32 s21, s17, 7", f"s_sub_u32 s23, {576 * 1152}, s21")
    a.srd(28, 10, "s21", "s23")
    a("v_lshrrev_b32 v5, 3, v2", "v_mul_u32_u24 v14, 1152, v5", "v_and_b32 v6, 7, v2", "v_bfe_u32 v7, v2, 4, 1",
      "v_lshlrev_b32 v7, 1, v7", "v_xor_b32 v7, v6, v7", "v_lshl_add_u32 v14, v7, 4, v14",
      "s_mul_i32 s21, s18, 18432", "v_add_u32 v14, s21, v14", "s_lshl_b32 s23, s18, 11")
    w_tr_addr(a, 16, 2, 5, 6, 7)
    def wdma_q(i):
        c, e = i // 2, i % 2
        return [f"s_add_u32 m0, s23, {(8 * c + e) * 1024}", f"s_mov_b32 s22, {(8 * c + e) * 9216}",
                "buffer_load_dwordx4 v14, s[28:31], s22 offen lds"]
    def reads_q(ks, s):
        return xread(ks, s) + w_tr_read(FR + 12 * s + 4, 16, ks, 0) + w_tr_read(FR + 12 * s + 8, 16, ks, 1)
    def mfma_q(ks, s):
        b = FR + 12 * s
        return [mfma(ACC, b + 4, b, "0" if ks == 0 else None), mfma(ACC + 16, b + 8, b, "0" if ks == 0 else None)]
    gemm_loop([2, 2, 2, 2, 10], wdma_q, reads_q, mfma_q, 5)
    a("s_mul_i32 s21, s20, 36864", "s_lshl_b32 s22, s17, 7", "s_add_u32 s21, s21, s22", f"s_add_u32 s21, s21, {WS_Q}")
    a.srd(24, 4, "s21", 36864)
    a("v_mul_u32_u24 v5, 1152, v12", "v_lshl_add_u32 v5, v13, 6, v5", f"s_mov_b32 s22, {f32bits(QSCALE)}")
    a.nop(8)
    for i in range(32): a(f"v_mul_f32 v{ACC + i}, s22, v{ACC + i}")
    for i in range(16): a(f"v_cvt_pk_bf16_f32 v{FR + i}, v{ACC + 2 * i}, v{ACC + 2 * i + 1}")
    for i in range(4): a(f"buffer_store_dwordx4 {vr(FR + 4 * i, 4)}, v5, s[24:27], 0 offen offset:{16 * i}")
    a("s_endpgm")
    a.label("K1_KV")
    a("s_cmp_ge_u32 s18, 2", "s_cselect_b32 s28, s14, s12", "s_cselect_b32 s29, s15, s13", "s_mov_b32 s30, 20736", "s_mov_b32 s31, 0x20000")
    a("s_and_b32 s21, s18, 1", "s_lshl_b32 s21, s21, 2", "v_lshlrev_b32 v14, 4, v2", "v_add_u32 v14, s21, v14", "s_mul_i32 s23, s18, 21504")
    a("v_lshrrev_b32 v5, 5, v2", "v_lshlrev_b32 v5, 3, v5", "v_bfe_u32 v6, v2, 2, 2", "v_add_u32 v5, v5, v6", "v_mul_u32_u24 v16, 36, v5",
      "v_and_b32 v6, 1, v6", "v_mul_u32_u24 v6, 21500, v6", "v_add_u32 v16, v16, v6",
      "v_and_b32 v5, 1, v2", "v_lshlrev_b32 v5, 4, v5", "v_bfe_u32 v6, v2, 1, 1", "v_lshl_add_u32 v5, v6, 3, v5",
      "v_and_b32 v6, 16, v2", "v_cmp_ne_u32 vcc, 0, v6", "s_nop 1", "v_cndmask_b32 v5, v5, 32, vcc", "v_add_u32 v16, v16, v5")
    def wdma_kv(i):
        return [f"s_add_u32 m0, s23, {i * 1024}", f"s_mov_b32 s22, {i * 1024}", "buffer_load_dwordx4 v14, s[28:31], s22 offen lds"]
    def reads_kv(ks, s):
        b = FR + 12 * s
        L = xread(ks, s)
        for mt in range(2):
            for p in range(2):
                L.append(f"ds_read_b64_tr_b16 {vr(b + 4 + 4 * mt + 2 * p, 2)}, v16 offset:{ks * 576 + p * 144 + mt * 43008}")
        return L
    def mfma_kv(ks, s):
        b = FR + 12 * s
        return [mfma(ACC, b + 4, b, "0" if ks == 0 else None), mfma(ACC + 16, b, b + 8, "0" if ks == 0 else None)]
    gemm_loop([3, 2, 2, 3, 11], wdma_kv, reads_kv, mfma_kv, 5)
    a("s_lshr_b32 s21, s20, 1", f"s_mul_i32 s21, s21, {REC}", f"s_add_u32 s21, s21, {WS_KV}", "s_and_b32 s22, s20, 1")
    a.srd(24, 4, "s21", REC)
    swap23(a, 5, 12, 6)
    a("s_lshl_b32 s23, s22, 10", "v_lshlrev_b32 v6, 4, v5", "v_lshl_add_u32 v6, v13, 9, v6", "v_add_u32 v6, s23, v6")
    a("s_lshl_b32 s23, s22, 7", "s_add_u32 s23, s23, 2048", "v_lshlrev_b32 v7, 2, v5", "v_add_u32 v7, s23, v7")
    a("s_mul_i32 s23, s22, 1216", "s_add_u32 s23, s23, 2304", "v_mul_u32_u24 v14, 304, v13", "v_lshl_add_u32 v14, v12, 4, v14", "v_add_u32 v14, s23, v14")
    a.nop(4)
    for i in range(5): a(f"v_cvt_pk_bf16_f32 v{FR + i}, v{ACC + 2 * i}, v{ACC + 2 * i + 1}")
    for i in range(8): a(f"v_cvt_pk_bf16_f32 v{FR + 8 + i}, v{ACC + 16 + 2 * i}, v{ACC + 16 + 2 * i + 1}")
    a(f"buffer_store_dwordx4 {vr(FR, 4)}, v6, s[24:27], 0 offen")
    a("v_cmp_eq_u32 vcc, 18, v12", "v_mov_b32 v15, 0x3f803f80", "s_nop 0")
    for i in range(8): a(f"v_cndmask_b32 v{FR + 8 + i}, v{FR + 8 + i}, v15, vcc")
    a("v_cmp_gt_u32 vcc, 19, v12", "s_and_saveexec_b64 s[32:33], vcc")
    a(f"buffer_store_dwordx4 {vr(FR + 8, 4)}, v14, s[24:27], 0 offen", f"buffer_store_dwordx4 {vr(FR + 12, 4)}, v14, s[24:27], 0 offen offset:608")
    a("s_mov_b32 exec_lo, -1", "s_mov_b32 exec_hi, 0")
    a(f"buffer_store_dword v{FR + 4}, v7, s[24:27], 0 offen")
    a("s_mov_b64 exec, -1")
    a("v_cmp_eq_u32 vcc, 0, v13", "v_mov_b32 v20, 0", "s_nop 0", f"v_cndmask_b32 v21, 0, v{FR + 4}, vcc")
    for r in [FR, FR + 1, FR + 2, FR + 3, 21]:
        a(f"v_dot2_f32_bf16 v20, v{r}, v{r}, v20")
    a("s_nop 2", "v_mov_b32 v21, v20", "s_nop 1", "v_permlane32_swap_b32 v20, v21", "s_nop 1", "v_add_f32 v20, v20, v21")
    for sh in (8, 4, 2, 1):
        a("s_nop 1", f"v_max_u32_dpp v20, v20, v20 row_ror:{sh} row_mask:0xf bank_mask:0xf")
    a("s_nop 0", "v_readlane_b32 s34, v20, 0", "v_readlane_b32 s35, v20, 16", "s_max_u32 s34, s34, s35")
    a.srd(24, 4, WS_KMAX, 256)
    a("s_lshl_b32 s35, s20, 2", "v_mov_b32 v20, s34", "v_mov_b32 v21, s35", "s_mov_b64 exec, 1", "buffer_store_dword v20, v21, s[24:27], 0 offen")
    a("s_endpgm")
    a.label("K1_PREP")
    a("s_load_dwordx4 s[8:11], s[0:1], 8")
    a("s_load_dwordx4 s[12:15], s[0:1], 24")
    a("s_load_dwordx2 s[6:7], s[0:1], 40")
    a(f"s_sub_u32 s16, s2, {K1_NG}", "s_and_b32 s17, s16, 7", "s_lshr_b32 s16, s16, 3")
    a("v_lshrrev_b32 v1, 6, v0", "v_and_b32 v2, 63, v0", "s_nop 0", "v_readfirstlane_b32 s18, v1")
    a("v_and_b32 v3, 31, v2", "v_lshrrev_b32 v4, 5, v2")
    a("s_lshl_b32 s19, s17, 2", "s_add_u32 s19, s19, s18",
      f"s_mul_i32 s20, s19, {64 * 1152}", "s_lshl_b32 s21, s16, 7", "s_add_u32 s20, s20, s21",
      f"v_mul_u32_u24 v5, {32 * 1152}, v4", "v_lshl_add_u32 v5, v3, 2, v5", "v_add_u32 v5, s20, v5",
      f"v_subrev_u32 v6, {4 * 1152}, v5")
    a("s_lshl_b32 s21, s16, 9", "v_lshlrev_b32 v7, 4, v3", "v_add_u32 v7, s21, v7")
    a("s_lshl_b32 s21, s16, 3", "s_add_u32 s21, s21, s17", "s_lshl_b32 s21, s21, 3",
      "v_lshrrev_b32 v8, 5, v0", "v_add_u32 v8, s21, v8",
      "v_lshlrev_b32 v9, 4, v3", "v_subrev_u32 v10, 236, v9", "v_max_i32 v10, 0, v10", "v_lshl_add_u32 v10, v8, 12, v10",
      "v_lshl_add_u32 v9, v8, 9, v9", "v_lshlrev_b32 v8, 1, v8")
    a("s_waitcnt lgkmcnt(0)")
    a.srd(24, 8, 0, 2359296); a.srd(28, 10, 0, 2359296); a.srd(32, 12, 0, 4608); a.srd(36, 14, 0, 2359296); a.srd(40, 6, 0, 1152)
    KR = 32; VR_ = 68; WR = 12; W8 = 16
    a(f"buffer_load_dwordx4 {vr(WR, 4)}, v7, s[32:35], 0 offen")
    nload = 1
    for i in range(4): a(f"buffer_load_dword v{KR + i}, v6, s[24:27], 0 offen offset:{1152 * i}")
    a(f"buffer_load_dword v{VR_}, v6, s[28:31], 0 offen offset:{1152 * 3}")
    nload += 5
    marks = {}
    for g in range(8):
        a(f"s_mov_b32 s22, {g * 4608}")
        for i in range(4):
            a(f"buffer_load_dword v{KR + 4 + 4 * g + i}, v5, s[24:27], s22 offen offset:{1152 * i}")
            a(f"buffer_load_dword v{VR_ + 1 + 4 * g + i}, v5, s[28:31], s22 offen offset:{1152 * i}")
        nload += 8
        marks[g] = nload
    a("buffer_load_dwordx4 v[104:107], v10, s[36:39], 0 offen", "buffer_load_ushort v108, v8, s[40:43], 0 offen")
    nload += 2
    a("s_mul_i32 s23, s18, 16896", "v_mul_u32_u24 v26, 528, v3", "v_xor_b32 v27, 1, v4", "v_lshl_add_u32 v26, v27, 7, v26", "v_add_u32 v26, s23, v26")
    a("v_mul_u32_u24 v27, 528, v4", "v_bfe_u32 v28, v2, 4, 1", "v_lshl_add_u32 v27, v28, 8, v27", "v_and_b32 v28, 15, v2", "v_lshl_add_u32 v27, v28, 4, v27", "v_add_u32 v27, s23, v27")
    a("v_lshrrev_b32 v29, 4, v2", "v_lshlrev_b32 v29, 13, v29", "v_lshl_add_u32 v29, v28, 4, v29")
    a("s_lshl_b32 s20, s16, 19", "s_lshl_b32 s21, s19, 8", f"s_sub_u32 s21, {248 * 32 + WS_XI}, s21", "s_add_u32 s20, s20, s21")
    a.srd(44, 4, "s20", 63 * 8192 + 256)
    a.srd(48, 4, WS_HP, 576 * 512)
    def wait_loads(n): a(f"s_waitcnt vmcnt({min(63, nload - n)})")
    wait_loads(marks[0])
    a("s_mov_b32 s22, 0xffff0000")
    for j in range(4):
        for e in range(2):
            src = WR + 2 * e + (j >> 1)
            a(f"v_lshlrev_b32 v{W8 + 2 * j + e}, 16, v{src}" if j % 2 == 0 else f"v_and_b32 v{W8 + 2 * j + e}, s22, v{src}")
    KU = 112
    VU = 120
    XV = 124
    CH = 144
    def unpack(dst, src): a(f"v_lshlrev_b32 v{dst}, 16, v{src}", f"v_and_b32 v{dst + 1}, s22, v{src}")
    for i in range(3): unpack(KU + 2 * (i % 4), KR + i)
    xv = lambda tau: XV + 2 * ((tau + 1) % 10)
    for tau in range(-1, 32):
        if tau >= 4 and tau % 4 == 0: wait_loads(marks[tau // 4])
        ki = tau + 4
        unpack(KU + 2 * (ki % 4), KR + ki)
        unpack(VU, VR_ + tau + 1)
        d = xv(tau)
        kk = lambda j: KU + 2 * ((ki - j) % 4)
        a(f"v_pk_mul_f32 {vr(d,2)}, {vr(kk(3),2)}, {vr(W8 + 6,2)}")
        for j in (2, 1, 0): a(f"v_pk_fma_f32 {vr(d,2)}, {vr(kk(j),2)}, {vr(W8 + 2 * j,2)}, {vr(d,2)}")
        a(f"v_pk_mul_f32 {vr(d,2)}, {vr(d,2)}, {vr(VU,2)}")
        if tau >= 0 and tau % 8 == 7:
            zl = tau // 8
            for e in range(2):
                for r in range(2):
                    cb_ = CH + 8 * e + 4 * r
                    for dd in range(4):
                        tl = 8 * zl + 6 + r - 2 * dd
                        a(f"v_cvt_pk_bf16_f32 v{cb_ + dd}, v{xv(tl) + e}, v{xv(tl - 1) + e}")
                    a(f"ds_write_b128 v26, {vr(cb_, 4)} offset:{e * 256 + (3 - zl) * 32 + 16 * r}")
    a("s_waitcnt vmcnt(0)")
    a("v_lshlrev_b32 v108, 16, v108", "v_lshlrev_b32 v109, 16, v104", "v_add_f32 v108, v108, v109", "v_and_b32 v109, s22, v104",
      "v_cvt_pk_bf16_f32 v108, v108, v109")
    a("v_cmp_lt_u32 vcc, 14, v3", "s_nop 1")
    for i in range(4): a(f"v_cndmask_b32 v{104 + i}, 0, v{104 + i}, vcc")
    a("v_cmp_eq_u32 vcc, 14, v3", "s_nop 1", "v_cndmask_b32 v107, v107, v108, vcc")
    a("buffer_store_dwordx4 v[104:107], v9, s[48:51], 0 offen")
    a("s_waitcnt lgkmcnt(0)")
    for i in range(16): a(f"ds_read_b128 {vr(32 + 4 * i, 4)}, v27 offset:{i * 1056}")
    for i in range(16):
        a(f"s_waitcnt lgkmcnt({15 - i})", f"s_mov_b32 s22, {i * 32768}", f"buffer_store_dwordx4 {vr(32 + 4 * i, 4)}, v29, s[44:47], s22 offen")
    a.label("K1_END")
    a("s_endpgm")

def build(parts=("k1", "k2", "k3")):
    import gen2
    hdr = open("cdna_kernels/" + NAME + ".s.ref").read().split("; Override launch")[0]
    a = A()
    L = [hdr.rstrip()]
    if "k1" in parts: L.append(f"; @launch kernel=k1_kernel grid=({K1_GRID},1,1) block=(256,1,1) lds={K1_LDS}")
    if "k2" in parts: L.append(f"; @launch kernel=k2_kernel grid=({gen2.K2_GRID},1,1) block=({gen2.K2_BLOCK},1,1) lds={gen2.K2_LDS}")
    if "k3" in parts: L.append(f"; @launch kernel=k3_kernel grid=({gen2.K3_GRID},1,1) block=(256,1,1) lds={gen2.K3_LDS}")
    L += ['.amdgcn_target "amdgcn-amd-amdhsa--gfx950"', ".text"]
    if "k1" in parts: gen_k1(a)
    if "k2" in parts: gen2.gen_k2(a)
    if "k3" in parts: gen2.gen_k3(a)
    L += [("  " + l if not l.endswith(":") and not l.startswith(".") else l) for l in a.L]
    L.append('.section .rodata,"a"')
    if "k1" in parts: L += kd("k1_kernel", 160)
    if "k2" in parts: L += kd("k2_kernel", gen2.K2_VGPR)
    if "k3" in parts: L += kd("k3_kernel", gen2.K3_VGPR)
    return "\n".join(L) + "\n"

if __name__ == "__main__":
    parts = sys.argv[2].split(",") if len(sys.argv) > 2 else ("k1", "k2", "k3")
    out = sys.argv[1] if len(sys.argv) > 1 else "cdna_kernels/" + NAME + ".s"
    open(out, "w").write(build(parts))
    print("wrote", out)
```

```python
import sys, math, struct
from attn_core import attn_iter, REC, vr

NAME = "concat_heads__ssm_conv_h3__grouped_kv_mqa__prompt"
WS_Q    = 0x000000
WS_KV   = 0x240000
WS_KMAX = 0x265000
WS_HP   = 0x270000
WS_XI   = 0x300000
WS_O    = 0x780000
WS_Y    = 0x9C0000
KV_BYTES = 32 * REC
KA = dict(q=0, k=8, v=16, shk=24, ssk=32, ssd=40, x=48, wq=56, wk=64, wv=72, wo=80, out=88, dbg=96, ws=104)

def f32bits(x): return struct.unpack("<I", struct.pack("<f", x))[0]
QSCALE = math.log2(math.e) / math.sqrt(18.0)

import os
STAMP = int(os.environ.get("STAMP", "0"))
WS_ST = 0xD00000
class A:
    def __init__(s): s.L = []
    def stamp(s, i):
        if STAMP: s(f"s_memtime s[{64+4*i}:{65+4*i}]", f"s_memrealtime s[{66+4*i}:{67+4*i}]")
    def stamp_out(s, kidx, n, wpb):
        if not STAMP: return
        s("s_mov_b64 exec, -1", "s_waitcnt vmcnt(0) lgkmcnt(0)")
        s.stamp(n)
        if STAMP == 2:
            s("s_load_dwordx2 s[62:63], s[0:1], 96", "v_lshrrev_b32 v1, 6, v0", "s_waitcnt lgkmcnt(0)", "v_readfirstlane_b32 s60, v1")
            s.srd(56, 62, 0, 256)
            s("s_mov_b64 exec, 1", "v_mov_b32 v1, 0", "s_not_b32 s61, s66", "v_mov_b32 v2, s61", "buffer_atomic_umax v2, v1, s[56:59], 0 offen offset:8")
            s.n2 = getattr(s, "n2", 0) + 1
            s(f"s_cmp_ge_u32 s60, {wpb}", f"s_cbranch_scc1 ST2_{s.n2}", f"v_mov_b32 v2, s{66+4*n}", "buffer_atomic_umax v2, v1, s[56:59], 0 offen offset:44", "s_endpgm", f"ST2_{s.n2}:")
            for i in range(n + 1):
                s(f"v_mov_b32 v2, s{66+4*i}", f"buffer_atomic_umax v2, v1, s[56:59], 0 offen offset:{12+4*i}", "s_nop 1")
            return
        s("s_waitcnt lgkmcnt(0)")
        s("v_lshrrev_b32 v1, 6, v0", "s_lshl_b32 s60, s2, 4", "v_add_u32 v1, s60, v1", "v_lshlrev_b32 v1, 6, v1")
        s.srd(56, 4, WS_ST + kidx * 0x40000, 0x40000)
        s("s_mov_b64 exec, 1")
        for i in range(n + 1):
            s(f"v_mov_b32 v2, s{64+4*i}", f"v_mov_b32 v3, s{66+4*i}", f"buffer_store_dwordx2 v[2:3], v1, s[56:59], 0 offen offset:{8*i}", "s_nop 1")
    def __call__(s, *lines):
        for l in lines:
            if isinstance(l, (list, tuple)): s.L.extend(l)
            else: s.L.append(l)
    def label(s, n): s.L.append(f"{n}:")
    def nop(s, n):
        while n > 0:
            k = min(n, 16); s.L.append(f"s_nop {k-1}"); n -= k
    def srd(s, d, base, off, nrec):
        if off is None or off == 0:
            s(f"s_mov_b32 s{d}, s{base}", f"s_mov_b32 s{d+1}, s{base+1}")
        else:
            s(f"s_add_u32 s{d}, s{base}, {off}", f"s_addc_u32 s{d+1}, s{base+1}, 0")
        s(f"s_mov_b32 s{d+2}, {nrec}", f"s_mov_b32 s{d+3}, 0x20000")

def kernel_head(a, name):
    a(f".globl {name}", ".p2align 8", f".type {name},@function", f"{name}:")

def kd(name, vgpr, sgpr=96):
    return [".p2align 6", f".amdhsa_kernel {name}", f"  .amdhsa_next_free_vgpr {vgpr}", f"  .amdhsa_next_free_sgpr {sgpr}",
            f"  .amdhsa_accum_offset {(vgpr + 3) // 4 * 4}", "  .amdhsa_group_segment_fixed_size 0", "  .amdhsa_kernarg_size 112",
            "  .amdhsa_user_sgpr_count 2", "  .amdhsa_user_sgpr_kernarg_segment_ptr 1", "  .amdhsa_system_sgpr_workgroup_id_x 1",
            "  .amdhsa_float_denorm_mode_32 3", ".end_amdhsa_kernel"]

def mfma(d, x, y, c=None):
    c = vr(d, 16) if c is None else c
    return f"v_mfma_f32_32x32x16_bf16 {vr(d,16)}, {vr(x,4)}, {vr(y,4)}, {c}"

def swap23(a, dst, src, t):
    a(f"v_and_b32 v{dst}, 0x13, v{src}",
      f"v_and_b32 v{t}, 4, v{src}", f"v_lshl_or_b32 v{dst}, v{t}, 1, v{dst}",
      f"v_and_b32 v{t}, 8, v{src}", f"v_lshrrev_b32 v{t}, 1, v{t}", f"v_or_b32 v{dst}, v{dst}, v{t}")

K1_NG = 160; K1_NP = 72; K1_GRID = K1_NG + K1_NP
K1_XR = 86016
K1_LDS = K1_XR + 4 * 16384

def w_tr_addr(a, dst0, lane, t0, t1, t2):
    a(f"v_lshrrev_b32 v{t0}, 5, v{lane}",
      f"v_lshlrev_b32 v{dst0}, 10, v{t0}",
      f"v_bfe_u32 v{t0}, v{lane}, 2, 2",
      f"v_lshl_add_u32 v{dst0}, v{t0}, 7, v{dst0}",
      f"v_lshrrev_b32 v{t0}, 1, v{t0}",
      f"v_lshl_add_u32 v{dst0}, v{t0}, 5, v{dst0}",
      f"v_and_b32 v{t0}, 1, v{lane}",
      f"v_lshl_add_u32 v{dst0}, v{t0}, 6, v{dst0}",
      f"v_bfe_u32 v{t0}, v{lane}, 4, 1",
      f"v_lshl_add_u32 v{dst0}, v{t0}, 4, v{dst0}",
      f"v_bfe_u32 v{t0}, v{lane}, 1, 1",
      f"v_lshl_add_u32 v{dst0}, v{t0}, 3, v{dst0}",
      f"v_xor_b32 v{dst0+1}, 32, v{dst0}",
      f"v_add_u32 v{dst0+2}, 0x8000, v{dst0}",
      f"v_add_u32 v{dst0+3}, 0x8000, v{dst0+1}")

def w_tr_read(dst, adr0, ks, t):
    hi = 1 if ks >= 16 else 0
    off = (ks - 16 * hi) * 2048
    ar = adr0 + 2 * hi + t
    return [f"ds_read_b64_tr_b16 {vr(dst,2)}, v{ar} offset:{off}", f"ds_read_b64_tr_b16 {vr(dst+2,2)}, v{ar} offset:{off+512}"]

def gen_k1(a):
    kernel_head(a, "k1_kernel")
    a(f"s_cmp_ge_u32 s2, {K1_GRID}", "s_cbranch_scc1 K1_END")
    a.stamp(0)
    a("s_load_dwordx2 s[4:5], s[0:1], 104")
    a(f"s_cmp_ge_u32 s2, {K1_NG}", "s_cbranch_scc1 K1_PREP")
    a("s_load_dwordx4 s[8:11], s[0:1], 48")
    a("s_load_dwordx4 s[12:15], s[0:1], 64")
    a("s_and_b32 s16, s2, 7", "s_lshr_b32 s17, s2, 3",
      "s_cmp_ge_u32 s17, 10", "s_cselect_b32 s18, 1, 0",
      "s_mul_i32 s19, s18, 10", "s_sub_u32 s17, s17, s19",
      "s_lshl_b32 s16, s16, 1", "s_add_u32 s16, s16, s18")
    a("v_lshrrev_b32 v1, 6, v0", "v_and_b32 v2, 63, v0", "s_nop 0", "v_readfirstlane_b32 s18, v1")
    a("v_lshrrev_b32 v5, 3, v2", "v_mul_u32_u24 v3, 1152, v5",
      "v_and_b32 v6, 7, v2", "v_lshrrev_b32 v7, 4, v2", "v_xor_b32 v7, v6, v7",
      "v_lshl_add_u32 v3, v7, 4, v3", "v_xor_b32 v4, 64, v3")
    a("v_and_b32 v12, 31, v2", "v_lshrrev_b32 v13, 5, v2",
      "v_bfe_u32 v7, v12, 1, 3", "v_xor_b32 v7, v7, v13", "v_lshlrev_b32 v8, 4, v7", "v_lshl_add_u32 v8, v12, 7, v8",
      "s_lshl_b32 s19, s18, 14", f"s_add_u32 s19, s19, {K1_XR}",
      "v_add_u32 v8, s19, v8", "v_xor_b32 v9, 32, v8", "v_xor_b32 v10, 64, v8", "v_xor_b32 v11, 96, v8")
    a("s_lshl_b32 s20, s16, 2", "s_add_u32 s20, s20, s18", "s_mul_i32 s21, s20, 36864")
    a("s_waitcnt lgkmcnt(0)")
    a.srd(24, 8, "s21", 36864)
    a("s_cmp_eq_u32 s17, 9", "s_cbranch_scc1 K1_KV")

    def xdma(c):
        L = []
        for q in range(4):
            L += [f"s_add_u32 m0, s19, {(c % 4) * 4096 + q * 1024}", f"s_mov_b32 s22, {q * 9216 + c * 128}",
                  f"buffer_load_dwordx4 v{3 + (q & 1)}, s[24:27], s22 offen lds"]
        return L

    def gemm_loop(wdma_counts, wdma, kstep_reads, kstep_mfma, nreads):
        order = []
        wi = 0
        for c in range(4):
            for _ in range(wdma_counts[c]):
                a(wdma(wi)); wi += 1; order.append(("w", c))
            a(xdma(c)); order += [("x", c)] * 4
        for _ in range(wdma_counts[4]):
            a(wdma(wi)); wi += 1; order.append(("w", 4))
        for c in range(9):
            need = max(i for i, (k, cc) in enumerate(order) if cc <= c)
            a(f"s_waitcnt vmcnt({len(order) - 1 - need})")
            if c <= 4: a("s_barrier")
            if c == 0: a.stamp(1)
            if c == 4: a.stamp(2)
            a(kstep_reads(4 * c, 0))
            for j in range(4):
                if j < 3:
                    a(kstep_reads(4 * c + j + 1, (j + 1) & 1))
                    a(f"s_waitcnt lgkmcnt({nreads})")
                else:
                    a("s_waitcnt lgkmcnt(0)")
                    if c + 4 < 9:
                        a(xdma(c + 4)); order += [("x", c + 4)] * 4
                a(kstep_mfma(4 * c + j, j & 1))

    ACC = 32; FR = 64
    def xread(ks, s):
        return [f"ds_read_b128 {vr(FR + 12 * s, 4)}, v{8 + (ks & 3)} offset:{((ks >> 2) & 3) * 4096}"]
    a("s_lshl_b32 s21, s17, 7", f"s_sub_u32 s23, {576 * 1152}, s21")
    a.srd(28, 10, "s21", "s23")
    a("v_lshrrev_b32 v5, 3, v2", "v_mul_u32_u24 v14, 1152, v5", "v_and_b32 v6, 7, v2", "v_bfe_u32 v7, v2, 4, 1",
      "v_lshlrev_b32 v7, 1, v7", "v_xor_b32 v7, v6, v7", "v_lshl_add_u32 v14, v7, 4, v14",
      "s_mul_i32 s21, s18, 18432", "v_add_u32 v14, s21, v14", "s_lshl_b32 s23, s18, 11")
    w_tr_addr(a, 16, 2, 5, 6, 7)
    def wdma_q(i):
        c, e = i // 2, i % 2
        return [f"s_add_u32 m0, s23, {(8 * c + e) * 1024}", f"s_mov_b32 s22, {(8 * c + e) * 9216}",
                "buffer_load_dwordx4 v14, s[28:31], s22 offen lds"]
    def reads_q(ks, s):
        return xread(ks, s) + w_tr_read(FR + 12 * s + 4, 16, ks, 0) + w_tr_read(FR + 12 * s + 8, 16, ks, 1)
    def mfma_q(ks, s):
        b = FR + 12 * s
        return [mfma(ACC, b + 4, b, "0" if ks == 0 else None), mfma(ACC + 16, b + 8, b, "0" if ks == 0 else None)]
    gemm_loop([2, 2, 2, 2, 10], wdma_q, reads_q, mfma_q, 5)
    a.stamp(3)
    a("s_mul_i32 s21, s20, 36864", "s_lshl_b32 s22, s17, 7", "s_add_u32 s21, s21, s22", f"s_add_u32 s21, s21, {WS_Q}")
    a.srd(24, 4, "s21", 36864)
    a("v_mul_u32_u24 v5, 1152, v12", "v_lshl_add_u32 v5, v13, 6, v5", f"s_mov_b32 s22, {f32bits(QSCALE)}")
    a.nop(8)
    for i in range(32): a(f"v_mul_f32 v{ACC + i}, s22, v{ACC + i}")
    for i in range(16): a(f"v_cvt_pk_bf16_f32 v{FR + i}, v{ACC + 2 * i}, v{ACC + 2 * i + 1}")
    for i in range(4): a(f"buffer_store_dwordx4 {vr(FR + 4 * i, 4)}, v5, s[24:27], 0 offen offset:{16 * i}")
    a.stamp_out(0, 4, 4)
    a("s_endpgm")
    a.label("K1_KV")
    a("s_cmp_ge_u32 s18, 2", "s_cselect_b32 s28, s14, s12", "s_cselect_b32 s29, s15, s13", "s_mov_b32 s30, 20736", "s_mov_b32 s31, 0x20000")
    a("s_and_b32 s21, s18, 1", "s_lshl_b32 s21, s21, 2", "v_lshlrev_b32 v14, 4, v2", "v_add_u32 v14, s21, v14", "s_mul_i32 s23, s18, 21504")
    a("v_lshrrev_b32 v5, 5, v2", "v_lshlrev_b32 v5, 3, v5", "v_bfe_u32 v6, v2, 2, 2", "v_add_u32 v5, v5, v6", "v_mul_u32_u24 v16, 36, v5",
      "v_and_b32 v6, 1, v6", "v_mul_u32_u24 v6, 21500, v6", "v_add_u32 v16, v16, v6",
      "v_and_b32 v5, 1, v2", "v_lshlrev_b32 v5, 4, v5", "v_bfe_u32 v6, v2, 1, 1", "v_lshl_add_u32 v5, v6, 3, v5",
      "v_and_b32 v6, 16, v2", "v_cmp_ne_u32 vcc, 0, v6", "s_nop 1", "v_cndmask_b32 v5, v5, 32, vcc", "v_add_u32 v16, v16, v5")
    def wdma_kv(i):
        return [f"s_add_u32 m0, s23, {i * 1024}", f"s_mov_b32 s22, {i * 1024}", "buffer_load_dwordx4 v14, s[28:31], s22 offen lds"]
    def reads_kv(ks, s):
        b = FR + 12 * s
        L = xread(ks, s)
        for mt in range(2):
            for p in range(2):
                L.append(f"ds_read_b64_tr_b16 {vr(b + 4 + 4 * mt + 2 * p, 2)}, v16 offset:{ks * 576 + p * 144 + mt * 43008}")
        return L
    def mfma_kv(ks, s):
        b = FR + 12 * s
        return [mfma(ACC, b + 4, b, "0" if ks == 0 else None), mfma(ACC + 16, b, b + 8, "0" if ks == 0 else None)]
    gemm_loop([3, 2, 2, 3, 11], wdma_kv, reads_kv, mfma_kv, 5)
    a.stamp(3)
    a("s_lshr_b32 s21, s20, 1", f"s_mul_i32 s21, s21, {REC}", f"s_add_u32 s21, s21, {WS_KV}", "s_and_b32 s22, s20, 1")
    a.srd(24, 4, "s21", REC)
    swap23(a, 5, 12, 6)
    a("s_lshl_b32 s23, s22, 10", "v_lshlrev_b32 v6, 4, v5", "v_lshl_add_u32 v6, v13, 9, v6", "v_add_u32 v6, s23, v6")
    a("s_lshl_b32 s23, s22, 7", "s_add_u32 s23, s23, 2048", "v_lshlrev_b32 v7, 2, v5", "v_add_u32 v7, s23, v7")
    a("s_mul_i32 s23, s22, 1216", "s_add_u32 s23, s23, 2304", "v_mul_u32_u24 v14, 304, v13", "v_lshl_add_u32 v14, v12, 4, v14", "v_add_u32 v14, s23, v14")
    a.nop(4)
    for i in range(5): a(f"v_cvt_pk_bf16_f32 v{FR + i}, v{ACC + 2 * i}, v{ACC + 2 * i + 1}")
    for i in range(8): a(f"v_cvt_pk_bf16_f32 v{FR + 8 + i}, v{ACC + 16 + 2 * i}, v{ACC + 16 + 2 * i + 1}")
    a(f"buffer_store_dwordx4 {vr(FR, 4)}, v6, s[24:27], 0 offen")
    a("v_cmp_eq_u32 vcc, 18, v12", "v_mov_b32 v15, 0x3f803f80", "s_nop 0")
    for i in range(8): a(f"v_cndmask_b32 v{FR + 8 + i}, v{FR + 8 + i}, v15, vcc")
    a("v_cmp_gt_u32 vcc, 19, v12", "s_and_saveexec_b64 s[32:33], vcc")
    a(f"buffer_store_dwordx4 {vr(FR + 8, 4)}, v14, s[24:27], 0 offen", f"buffer_store_dwordx4 {vr(FR + 12, 4)}, v14, s[24:27], 0 offen offset:608")
    a("s_mov_b32 exec_lo, -1", "s_mov_b32 exec_hi, 0")
    a(f"buffer_store_dword v{FR + 4}, v7, s[24:27], 0 offen")
    a("s_mov_b64 exec, -1")
    a("v_cmp_eq_u32 vcc, 0, v13", "v_mov_b32 v20, 0", "s_nop 0", f"v_cndmask_b32 v21, 0, v{FR + 4}, vcc")
    for r in [FR, FR + 1, FR + 2, FR + 3, 21]:
        a(f"v_dot2_f32_bf16 v20, v{r}, v{r}, v20")
    a("s_nop 2", "v_mov_b32 v21, v20", "s_nop 1", "v_permlane32_swap_b32 v20, v21", "s_nop 1", "v_add_f32 v20, v20, v21")
    for sh in (8, 4, 2, 1):
        a("s_nop 1", f"v_max_u32_dpp v20, v20, v20 row_ror:{sh} row_mask:0xf bank_mask:0xf")
    a("s_nop 0", "v_readlane_b32 s34, v20, 0", "v_readlane_b32 s35, v20, 16", "s_max_u32 s34, s34, s35")
    a.srd(24, 4, WS_KMAX, 256)
    a("s_lshl_b32 s35, s20, 2", "v_mov_b32 v20, s34", "v_mov_b32 v21, s35", "s_mov_b64 exec, 1", "buffer_store_dword v20, v21, s[24:27], 0 offen")
    a.stamp_out(0, 4, 4)
    a("s_endpgm")
    a.label("K1_PREP")
    a("s_load_dwordx4 s[8:11], s[0:1], 8")
    a("s_load_dwordx4 s[12:15], s[0:1], 24")
    a("s_load_dwordx2 s[6:7], s[0:1], 40")
    a(f"s_sub_u32 s16, s2, {K1_NG}", "s_and_b32 s17, s16, 7", "s_lshr_b32 s16, s16, 3")
    a("v_lshrrev_b32 v1, 6, v0", "v_and_b32 v2, 63, v0", "s_nop 0", "v_readfirstlane_b32 s18, v1")
    a("v_and_b32 v3, 31, v2", "v_lshrrev_b32 v4, 5, v2")
    a("s_lshl_b32 s19, s17, 2", "s_add_u32 s19, s19, s18",
      f"s_mul_i32 s20, s19, {64 * 1152}", "s_lshl_b32 s21, s16, 7", "s_add_u32 s20, s20, s21",
      f"v_mul_u32_u24 v5, {32 * 1152}, v4", "v_lshl_add_u32 v5, v3, 2, v5", "v_add_u32 v5, s20, v5",
      f"v_subrev_u32 v6, {4 * 1152}, v5")
    a("s_lshl_b32 s21, s16, 9", "v_lshlrev_b32 v7, 4, v3", "v_add_u32 v7, s21, v7")
    a("s_lshl_b32 s21, s16, 3", "s_add_u32 s21, s21, s17", "s_lshl_b32 s21, s21, 3",
      "v_lshrrev_b32 v8, 5, v0", "v_add_u32 v8, s21, v8",
      "v_lshlrev_b32 v9, 4, v3", "v_subrev_u32 v10, 236, v9", "v_max_i32 v10, 0, v10", "v_lshl_add_u32 v10, v8, 12, v10",
      "v_lshl_add_u32 v9, v8, 9, v9", "v_lshlrev_b32 v8, 1, v8")
    a("s_waitcnt lgkmcnt(0)")
    a.srd(24, 8, 0, 2359296); a.srd(28, 10, 0, 2359296); a.srd(32, 12, 0, 4608); a.srd(36, 14, 0, 2359296); a.srd(40, 6, 0, 1152)
    KR = 32; VR_ = 68; WR = 12; W8 = 16
    a(f"buffer_load_dwordx4 {vr(WR, 4)}, v7, s[32:35], 0 offen")
    nload = 1
    for i in range(4): a(f"buffer_load_dword v{KR + i}, v6, s[24:27], 0 offen offset:{1152 * i}")
    a(f"buffer_load_dword v{VR_}, v6, s[28:31], 0 offen offset:{1152 * 3}")
    nload += 5
    marks = {}
    for g in range(8):
        a(f"s_mov_b32 s22, {g * 4608}")
        for i in range(4):
            a(f"buffer_load_dword v{KR + 4 + 4 * g + i}, v5, s[24:27], s22 offen offset:{1152 * i}")
            a(f"buffer_load_dword v{VR_ + 1 + 4 * g + i}, v5, s[28:31], s22 offen offset:{1152 * i}")
        nload += 8
        marks[g] = nload
    a("buffer_load_dwordx4 v[104:107], v10, s[36:39], 0 offen", "buffer_load_ushort v108, v8, s[40:43], 0 offen")
    nload += 2
    a("s_mul_i32 s23, s18, 16896", "v_mul_u32_u24 v26, 528, v3", "v_xor_b32 v27, 1, v4", "v_lshl_add_u32 v26, v27, 7, v26", "v_add_u32 v26, s23, v26")
    a("v_mul_u32_u24 v27, 528, v4", "v_bfe_u32 v28, v2, 4, 1", "v_lshl_add_u32 v27, v28, 8, v27", "v_and_b32 v28, 15, v2", "v_lshl_add_u32 v27, v28, 4, v27", "v_add_u32 v27, s23, v27")
    a("v_lshrrev_b32 v29, 4, v2", "v_lshlrev_b32 v29, 13, v29", "v_lshl_add_u32 v29, v28, 4, v29")
    a("s_lshl_b32 s20, s16, 19", "s_lshl_b32 s21, s19, 8", f"s_sub_u32 s21, {248 * 32 + WS_XI}, s21", "s_add_u32 s20, s20, s21")
    a.srd(44, 4, "s20", 63 * 8192 + 256)
    a.srd(48, 4, WS_HP, 576 * 512)
    def wait_loads(n): a(f"s_waitcnt vmcnt({min(63, nload - n)})")
    wait_loads(marks[0])
    a.stamp(1)
    a("s_mov_b32 s22, 0xffff0000")
    for j in range(4):
        for e in range(2):
            src = WR + 2 * e + (j >> 1)
            a(f"v_lshlrev_b32 v{W8 + 2 * j + e}, 16, v{src}" if j % 2 == 0 else f"v_and_b32 v{W8 + 2 * j + e}, s22, v{src}")
    KU = 112
    VU = 120
    XV = 124
    CH = 144
    def unpack(dst, src): a(f"v_lshlrev_b32 v{dst}, 16, v{src}", f"v_and_b32 v{dst + 1}, s22, v{src}")
    for i in range(3): unpack(KU + 2 * (i % 4), KR + i)
    xv = lambda tau: XV + 2 * ((tau + 1) % 10)
    for tau in range(-1, 32):
        if tau >= 4 and tau % 4 == 0: wait_loads(marks[tau // 4])
        ki = tau + 4
        unpack(KU + 2 * (ki % 4), KR + ki)
        unpack(VU, VR_ + tau + 1)
        d = xv(tau)
        kk = lambda j: KU + 2 * ((ki - j) % 4)
        a(f"v_pk_mul_f32 {vr(d,2)}, {vr(kk(3),2)}, {vr(W8 + 6,2)}")
        for j in (2, 1, 0): a(f"v_pk_fma_f32 {vr(d,2)}, {vr(kk(j),2)}, {vr(W8 + 2 * j,2)}, {vr(d,2)}")
        a(f"v_pk_mul_f32 {vr(d,2)}, {vr(d,2)}, {vr(VU,2)}")
        if tau >= 0 and tau % 8 == 7:
            zl = tau // 8
            for e in range(2):
                for r in range(2):
                    cb_ = CH + 8 * e + 4 * r
                    for dd in range(4):
                        tl = 8 * zl + 6 + r - 2 * dd
                        a(f"v_cvt_pk_bf16_f32 v{cb_ + dd}, v{xv(tl) + e}, v{xv(tl - 1) + e}")
                    a(f"ds_write_b128 v26, {vr(cb_, 4)} offset:{e * 256 + (3 - zl) * 32 + 16 * r}")
    a.stamp(2)
    a("s_waitcnt vmcnt(0)")
    a("v_lshlrev_b32 v108, 16, v108", "v_lshlrev_b32 v109, 16, v104", "v_add_f32 v108, v108, v109", "v_and_b32 v109, s22, v104",
      "v_cvt_pk_bf16_f32 v108, v108, v109")
    a("v_cmp_lt_u32 vcc, 14, v3", "s_nop 1")
    for i in range(4): a(f"v_cndmask_b32 v{104 + i}, 0, v{104 + i}, vcc")
    a("v_cmp_eq_u32 vcc, 14, v3", "s_nop 1", "v_cndmask_b32 v107, v107, v108, vcc")
    a("buffer_store_dwordx4 v[104:107], v9, s[48:51], 0 offen")
    a.stamp(3)
    a("s_waitcnt lgkmcnt(0)")
    for i in range(16): a(f"ds_read_b128 {vr(32 + 4 * i, 4)}, v27 offset:{i * 1056}")
    for i in range(16):
        a(f"s_waitcnt lgkmcnt({15 - i})", f"s_mov_b32 s22, {i * 32768}", f"buffer_store_dwordx4 {vr(32 + 4 * i, 4)}, v29, s[44:47], s22 offen")
    a.stamp_out(0, 4, 4)
    a.label("K1_END")
    a("s_endpgm")

def build(parts=("k1", "k2", "k3")):
    import gen2
    hdr = open("cdna_kernels/" + NAME + ".s.ref").read().split("; Override launch")[0]
    a = A()
    L = [hdr.rstrip()]
    if "k1" in parts: L.append(f"; @launch kernel=k1_kernel grid=({K1_GRID},1,1) block=(256,1,1) lds={K1_LDS}")
    if "k2" in parts: L.append(f"; @launch kernel=k2_kernel grid=({gen2.K2_GRID},1,1) block=({gen2.K2_BLOCK},1,1) lds={gen2.K2_LDS}")
    if "k3" in parts: L.append(f"; @launch kernel=k3_kernel grid=({gen2.K3_GRID},1,1) block=(256,1,1) lds={gen2.K3_LDS}")
    L += ['.amdgcn_target "amdgcn-amd-amdhsa--gfx950"', ".text"]
    if "k1" in parts: gen_k1(a)
    if "k2" in parts: gen2.gen_k2(a)
    if "k3" in parts: gen2.gen_k3(a)
    L += [("  " + l if not l.endswith(":") and not l.startswith(".") else l) for l in a.L]
    L.append('.section .rodata,"a"')
    if "k1" in parts: L += kd("k1_kernel", 160)
    if "k2" in parts: L += kd("k2_kernel", gen2.K2_VGPR)
    if "k3" in parts: L += kd("k3_kernel", gen2.K3_VGPR)
    return "\n".join(L) + "\n"

if __name__ == "__main__":
    parts = sys.argv[2].split(",") if len(sys.argv) > 2 else ("k1", "k2", "k3")
    out = sys.argv[1] if len(sys.argv) > 1 else "cdna_kernels/" + NAME + ".s"
    open(out, "w").write(build(parts))
    print("wrote", out)
```

```python
from gen import *

K2_GRID = 256; K2_BLOCK = 704; K2_LDS = 161280; K2_VGPR = 128
R = dict(O=72, idx=7, V=88, Km=104, Kt=112, Qm=116, Qt=114, aK=4, aT=5, aV=6)
SX, SY = 8, 40

def gen_k2(a):
    O, V, Km, Kt, Qm, Qt = R["O"], R["V"], R["Km"], R["Kt"], R["Qm"], R["Qt"]
    kernel_head(a, "k2_kernel")
    a(f"s_cmp_ge_u32 s2, {K2_GRID}", "s_cbranch_scc1 K2_END")
    a.stamp(0)
    a("s_load_dwordx2 s[4:5], s[0:1], 104", "s_load_dwordx2 s[6:7], s[0:1], 32")
    a("v_lshrrev_b32 v1, 6, v0", "v_and_b32 v2, 63, v0", "s_nop 0", "v_readfirstlane_b32 s18, v1")
    a("v_and_b32 v1, 31, v2", "v_lshrrev_b32 v3, 5, v2")
    a("s_cmp_ge_u32 s18, 8", "s_cbranch_scc1 K2_CONV")
    a("s_lshl_b32 s16, s2, 3", "s_add_u32 s16, s16, s18")
    a("s_mul_i32 s17, s16, 1152")
    a("v_mul_u32_u24 v120, 36, v1", "v_lshl_add_u32 v121, v3, 4, v120")
    a("v_lshlrev_b32 v4, 4, v2", "v_lshlrev_b32 v5, 2, v2")
    a("s_lshl_b32 m0, s18, 10")
    a("s_waitcnt lgkmcnt(0)")
    a.srd(24, 4, "s17", 1152)
    a.srd(28, 4, WS_KV, KV_BYTES + 256)
    a(f"buffer_load_dwordx4 {vr(Qm,4)}, v121, s[24:27], 0 offen",
      f"buffer_load_dword v{Qt}, v120, s[24:27], 0 offen offset:32",
      f"s_mov_b32 s20, {KV_BYTES}", "buffer_load_dword v122, v5, s[28:31], s20 offen")
    a(f"s_mov_b32 s30, {KV_BYTES}")
    for j in range(19):
        a("buffer_load_dwordx4 v4, s[28:31], m0 offen lds")
        if j < 18: a("s_add_u32 m0, m0, 8192", "s_nop 0")
    a("v_mov_b32 v6, 4", "v_cmp_gt_u32 vcc, 19, v1", "s_nop 1", "v_cndmask_b32 v6, v6, v1, vcc",
      "v_subrev_u32 v123, 20, v1", "v_cmp_gt_u32 vcc, 8, v123", "s_nop 1", "v_cndmask_b32 v6, v6, 0, vcc",
      "v_lshlrev_b32 v6, 4, v6", "v_mul_u32_u24 v123, 304, v3", "v_add_u32 v6, v6, v123")
    a("v_mov_b32 v7, 0xdddddddd", f"v_mov_b32 v{Kt+1}, 0x3f80")
    for i in range(16): a(f"v_mov_b32 v{O+i}, 0")
    a("s_waitcnt vmcnt(19)")
    a.stamp(1)
    a("v_cmp_eq_u32 vcc, 0, v3", "v_mov_b32 v123, 0", "s_nop 0", f"v_cndmask_b32 v124, 0, v{Qt}, vcc")
    for r in [Qm, Qm + 1, Qm + 2, Qm + 3, 124]:
        a(f"v_dot2_f32_bf16 v123, v{r}, v{r}, v123")
    for sh in (8, 4, 2, 1):
        a(f"v_max_u32_dpp v122, v122, v122 row_ror:{sh} row_mask:0xf bank_mask:0xf", "s_nop 1")
    a("v_mov_b32 v124, v123", "v_readlane_b32 s20, v122, 0", "v_readlane_b32 s21, v122, 16",
      "v_permlane32_swap_b32 v123, v124", "v_readlane_b32 s22, v122, 32", "v_readlane_b32 s23, v122, 48",
      "s_max_u32 s20, s20, s21", "s_max_u32 s22, s22, s23", "s_max_u32 s20, s20, s22",
      "v_add_f32 v123, v123, v124", "v_mul_f32 v123, s20, v123", "v_sqrt_f32 v123, v123", "s_nop 0",
      f"v_mul_f32 v123, {f32bits(1.01)}, v123",
      f"s_mov_b32 s21, {f32bits(32.0)}", "v_cmp_nge_f32 vcc, s21, v123",
      f"v_cvt_pk_bf16_f32 v{Qt+1}, -v123, 0",
      "s_cmp_lg_u64 vcc, 0", "s_cbranch_scc1 K2_SLOW")
    a("s_waitcnt vmcnt(16)", "s_barrier")
    a.stamp(2)
    a(f"ds_read_b32 v{Kt}, v5 offset:2048", f"ds_read_b128 {vr(Km,4)}, v4", f"ds_read_b128 {vr(Km+4,4)}, v4 offset:1024")
    for f in range(4): a(f"ds_read_b128 {vr(V+4*f,4)}, v6 offset:{2304 + 608*f}")
    a("s_waitcnt lgkmcnt(4)")
    a(mfma(SX, Km, Qm, "0"), mfma(SX + 16, Km + 4, Qm, "0"))
    a(f"ds_read_b128 {vr(Km,4)}, v4 offset:{REC}", f"ds_read_b128 {vr(Km+4,4)}, v4 offset:{REC + 1024}")
    a.nop(8)
    a(f"v_mfma_f32_32x32x4_2b_bf16 {vr(SX,32)}, {vr(Kt,2)}, {vr(Qt,2)}, {vr(SX,32)}")
    a(f"ds_read_b32 v{Kt}, v5 offset:{REC + 2048}")
    a.nop(18)
    a("s_waitcnt lgkmcnt(0)")
    for r in range(4):
        if r == 3: a("s_waitcnt vmcnt(11)", "s_barrier")
        a(attn_iter(R, SX if r % 2 == 0 else SY, SY if r % 2 == 0 else SX, r * REC, pv11_prev=(r > 0)))
    a("s_mov_b32 s20, 1")
    a.stamp(3)
    a(".p2align 6")
    a.label("K2_LOOP")
    a(f"v_add_u32 v4, {4*REC}, v4", f"v_add_u32 v5, {4*REC}, v5", f"v_add_u32 v6, {4*REC}, v6")
    a("s_cmp_lg_u32 s20, 2", "s_cbranch_scc1 K2_NOBAR", "s_waitcnt vmcnt(0)", "s_barrier")
    a.label("K2_NOBAR")
    for r in range(4):
        a(attn_iter(R, SX if r % 2 == 0 else SY, SY if r % 2 == 0 else SX, r * REC))
    a("s_add_u32 s20, s20, 1", "s_cmp_lt_u32 s20, 8", "s_cbranch_scc1 K2_LOOP")
    a("s_waitcnt lgkmcnt(0)")
    a(f"v_smfmac_f32_32x32x32_bf16 {vr(O,16)}, {vr(V+12,4)}, {vr(SY+24,8)}, v7")
    a.label("K2_FIN")
    a.stamp(4)
    a("s_lshr_b32 s20, s16, 5", "s_mul_i32 s20, s20, 36864", "s_and_b32 s21, s16, 31", "s_lshl_b32 s21, s21, 4",
      "s_add_u32 s20, s20, s21", f"s_add_u32 s20, s20, {WS_O}", "s_sub_u32 s21, 36864, s21")
    a.srd(24, 4, "s20", "s21")
    a("v_lshlrev_b32 v4, 10, v1", "v_lshl_add_u32 v4, v3, 9, v4")
    a("v_lshrrev_b32 v5, 2, v1", "v_lshlrev_b32 v5, 9, v5", "v_and_b32 v6, 3, v1", "v_lshl_add_u32 v5, v6, 2, v5", "v_add_u32 v5, 0x8000, v5")
    a(f"v_mov_b32 v8, v{O+10}", f"v_mov_b32 v9, v{O+10}", "s_nop 1", "v_permlane32_swap_b32 v8, v9", "s_nop 1", "v_rcp_f32 v8, v8", "s_nop 0")
    for i in range(10): a(f"v_mul_f32 v{O+i}, v8, v{O+i}")
    for i in range(5): a(f"v_cvt_pk_bf16_f32 v{12+i}, v{O+2*i}, v{O+2*i+1}")
    a("buffer_store_dwordx4 v[12:15], v4, s[24:27], 0 offen", "s_mov_b32 exec_lo, -1", "s_mov_b32 exec_hi, 0", "buffer_store_dword v16, v5, s[24:27], 0 offen")
    a.stamp_out(1, 5, 11)
    a("s_endpgm")
    a.label("K2_SLOW")
    a("s_waitcnt vmcnt(0)", "s_barrier", "s_barrier", "s_barrier")
    a(f"v_mov_b32 v{Qt+1}, 0", "v_mov_b32 v123, 0xff800000", "v_mov_b32 v120, v4", "v_mov_b32 v121, v5")
    def qk_slow():
        a(f"ds_read_b32 v{Kt}, v121 offset:2048", f"ds_read_b128 {vr(Km,4)}, v120", f"ds_read_b128 {vr(Km+4,4)}, v120 offset:1024")
        a("s_waitcnt lgkmcnt(0)")
        a(mfma(SX, Km, Qm, "0"), mfma(SX + 16, Km + 4, Qm, "0"))
        a.nop(10)
        a(f"v_mfma_f32_32x32x4_2b_bf16 {vr(SX,32)}, {vr(Kt,2)}, {vr(Qt,2)}, {vr(SX,32)}")
        a(f"v_add_u32 v120, {REC}, v120", f"v_add_u32 v121, {REC}, v121")
        a.nop(20)
    a("s_mov_b32 s20, 0")
    a.label("K2_SLOW1")
    qk_slow()
    for i in range(16): a(f"v_max3_f32 v123, v123, v{SX+2*i}, v{SX+2*i+1}")
    a("s_add_u32 s20, s20, 1", "s_cmp_lt_u32 s20, 32", "s_cbranch_scc1 K2_SLOW1")
    a("v_mov_b32 v124, v123", "s_nop 1", "v_permlane32_swap_b32 v123, v124", "s_nop 1", "v_max_f32 v123, v123, v124")
    a("v_mov_b32 v120, v4", "v_mov_b32 v121, v5", "s_mov_b32 s20, 0")
    a.label("K2_SLOW2")
    for f in range(4): a(f"ds_read_b128 {vr(V+4*f,4)}, v6 offset:{2304 + 608*f}")
    qk_slow()
    a(f"v_add_u32 v6, {REC}, v6")
    for i in range(32): a(f"v_sub_f32 v{SX+i}, v{SX+i}, v123")
    for i in range(32): a(f"v_exp_f32 v{SX+i}, v{SX+i}")
    a("s_nop 1")
    for f in range(4): a(f"v_smfmac_f32_32x32x32_bf16 {vr(O,16)}, {vr(V+4*f,4)}, {vr(SX+8*f,8)}, v7")
    a("s_nop 7")
    a("s_add_u32 s20, s20, 1", "s_cmp_lt_u32 s20, 32", "s_cbranch_scc1 K2_SLOW2")
    a("s_branch K2_FIN")
    a.label("K2_CONV")
    a("s_sub_u32 s18, s18, 8", "s_lshl_b32 s18, s18, 5", "s_lshr_b32 s19, s2, 3", "s_add_u32 s18, s18, s19",
      "s_cmp_ge_u32 s18, 72", "s_cbranch_scc1 K2_END",
      "s_and_b32 s19, s2, 7", "s_mul_i32 s19, s19, 72", "s_add_u32 s18, s18, s19")
    a("v_lshrrev_b32 v4, 2, v1", "v_lshlrev_b32 v4, 5, v4", "v_and_b32 v5, 3, v1", "v_lshl_add_u32 v4, v5, 2, v4", "v_lshl_add_u32 v4, v3, 4, v4",
      "v_add_u32 v5, 20, v4")
    a("v_lshrrev_b32 v6, 2, v1", "v_lshlrev_b32 v6, 4, v6", "v_bfe_u32 v7, v1, 1, 1", "v_add_u32 v6, v6, v7", "v_sub_u32 v6, 113, v6",
      "v_add_u32 v6, v6, v3", "v_lshlrev_b32 v6, 5, v6", "v_and_b32 v7, 1, v1", "v_lshl_add_u32 v6, v7, 4, v6", "v_add_u32 v7, 0x1000, v6")
    a("s_lshl_b32 s19, s18, 12", "s_lshl_b32 s20, s18, 9", f"s_add_u32 s20, s20, {WS_HP}", "s_lshl_b32 s21, s18, 13", f"s_add_u32 s21, s21, {WS_XI}")
    a("s_waitcnt lgkmcnt(0)")
    a.srd(24, 6, "s19", 4096); a.srd(28, 4, "s20", 512); a.srd(32, 4, "s21", 8192)
    Y0, Y1, FB, D = 8, 24, 40, 4
    def loads(i):
        b = FB + 16 * (i % D)
        L = [f"buffer_load_dwordx4 {vr(b,4)}, v4, s[28:31], 0 offen offset:{32*i}" if i < 8 else
             f"buffer_load_dwordx4 {vr(b,4)}, v5, s[24:27], 0 offen offset:{32*(i-8)}",
             f"buffer_load_dwordx4 {vr(b+4,4)}, v6, s[32:35], 0 offen offset:{64*i}",
             f"buffer_load_dwordx4 {vr(b+8,4)}, v7, s[32:35], 0 offen offset:{64*i}",
             f"buffer_load_dwordx4 {vr(b+12,4)}, v5, s[24:27], 0 offen offset:{32*i+1792}"]
        return L
    for i in range(D): a(loads(i))
    a.stamp(1)
    a("s_barrier")
    a.stamp(2)
    for i in range(64):
        if i in (2, 10): a("s_barrier")
        if i == 10: a.stamp(3)
        b = FB + 16 * (i % D)
        a(f"s_waitcnt vmcnt({4 * min(D - 1, 63 - i)})")
        a(mfma(Y1, b, b + 4, "0" if i == 0 else None), mfma(Y0, b, b + 8, "0" if i == 0 else None), mfma(Y1, b + 12, b + 8))
        if i + D < 64: a(loads(i + D))
    a.stamp(4)
    a("s_lshr_b32 s19, s18, 3", "s_lshl_b32 s19, s19, 15", "s_and_b32 s20, s18, 7", "s_lshl_b32 s20, s20, 4", "s_add_u32 s19, s19, s20",
      f"s_add_u32 s19, s19, {WS_Y}", "s_sub_u32 s20, 32768, s20")
    a.srd(24, 4, "s19", "s20")
    a("v_lshlrev_b32 v4, 7, v2")
    a.nop(4)
    for i in range(16): a(f"v_cvt_pk_bf16_f32 v{FB+i}, v{Y0+2*i}, v{Y0+2*i+1}")
    for i in range(4): a(f"s_mov_b32 s19, {8192*i}", f"buffer_store_dwordx4 {vr(FB+4*i,4)}, v4, s[24:27], s19 offen")
    a.stamp_out(1, 5, 11)
    a.label("K2_END")
    a("s_endpgm")

K3_NG = 144; K3_NE = 96; K3_GRID = K3_NG + K3_NE; K3_LDS = 73728; K3_VGPR = 224

def gen_k3(a):
    kernel_head(a, "k3_kernel")
    a(f"s_cmp_ge_u32 s2, {K3_GRID}", "s_cbranch_scc1 K3_END")
    a.stamp(0)
    a("s_load_dwordx2 s[4:5], s[0:1], 104", "s_load_dwordx4 s[8:11], s[0:1], 80", "s_load_dwordx2 s[6:7], s[0:1], 0")
    a("v_lshrrev_b32 v1, 6, v0", "v_and_b32 v2, 63, v0", "s_nop 0", "v_readfirstlane_b32 s18, v1")
    a("v_and_b32 v12, 31, v2", "v_lshrrev_b32 v13, 5, v2")
    a(f"s_cmp_ge_u32 s2, {K3_NG}", "s_cbranch_scc1 K3_EPI")
    a("s_and_b32 s16, s2, 7", "s_lshr_b32 s17, s2, 3", "s_cmp_ge_u32 s17, 9", "s_cselect_b32 s19, 1, 0",
      "s_mul_i32 s20, s19, 9", "s_sub_u32 s17, s17, s20", "s_lshl_b32 s16, s16, 1", "s_add_u32 s16, s16, s19")
    a("s_lshl_b32 s20, s16, 2", "s_add_u32 s20, s20, s18", "s_mul_i32 s21, s20, 36864", f"s_add_u32 s21, s21, {WS_O}")
    a("v_lshlrev_b32 v3, 4, v2")
    a("v_lshrrev_b32 v5, 3, v2", "v_and_b32 v6, 7, v2", "v_bfe_u32 v7, v2, 4, 1", "v_lshlrev_b32 v7, 1, v7", "v_xor_b32 v7, v6, v7", "v_lshlrev_b32 v7, 4, v7",
      "v_mul_u32_u24 v14, 1152, v5", "v_add_u32 v14, v14, v7", f"s_mul_i32 s22, s18, {18*1152}", "v_add_u32 v14, s22, v14",
      "v_lshrrev_b32 v6, 1, v5", "v_mul_u32_u24 v6, 18, v6", "v_and_b32 v5, 1, v5", "v_add_u32 v6, v6, v5", "v_mul_u32_u24 v15, 1152, v6",
      "v_add_u32 v15, v15, v7", f"s_mul_i32 s22, s18, {144*1152}", "v_add_u32 v15, s22, v15", "s_lshl_b32 s23, s18, 11")
    a("s_lshl_b32 s19, s17, 7", f"s_sub_u32 s22, {576*1152}, s19")
    a("s_waitcnt lgkmcnt(0)")
    a.srd(24, 4, "s21", 36864)
    a.srd(28, 8, "s19", "s22")
    OF = 80; ACC = 32; FR = 64
    for c in range(9):
        for e in range(2):
            so = (72 * c + 8 * e) * 1152 if c < 8 else (72 * e + 16) * 1152
            a(f"s_add_u32 m0, s23, {(8*c+e)*1024}", f"s_mov_b32 s22, {so}", f"buffer_load_dwordx4 v{14 if c < 8 else 15}, s[28:31], s22 offen lds")
        a(f"s_mov_b32 s22, {c*4096}")
        for j in range(4): a(f"buffer_load_dwordx4 {vr(OF+16*c+4*j,4)}, v3, s[24:27], s22 offen offset:{1024*j}")
    w_tr_addr(a, 16, 2, 5, 6, 7)
    reads = lambda ks, s: w_tr_read(FR + 8 * s, 16, ks, 0) + w_tr_read(FR + 8 * s + 4, 16, ks, 1)
    for c in range(9):
        a(f"s_waitcnt vmcnt({6 * (8 - c)})", "s_barrier")
        if c == 0: a.stamp(1)
        if c == 4: a.stamp(2)
        a(reads(4 * c, 0))
        for j in range(4):
            ks = 4 * c + j
            if j < 3: a(reads(ks + 1, (j + 1) & 1), "s_waitcnt lgkmcnt(4)")
            else: a("s_waitcnt lgkmcnt(0)")
            b = FR + 8 * (j & 1)
            a(mfma(ACC, b, OF + 4 * ks, "0" if ks == 0 else None), mfma(ACC + 16, b + 4, OF + 4 * ks, "0" if ks == 0 else None))
    a.stamp(3)
    a(f"s_mul_i32 s21, s20, {32*2304}", "s_add_u32 s21, s21, s19", "s_add_u32 s21, s21, 1152")
    a.srd(24, 10, "s21", 31 * 2304 + 128)
    a("v_mul_u32_u24 v5, 2304, v12", "v_lshl_add_u32 v5, v13, 6, v5")
    a.nop(8)
    for i in range(16): a(f"v_cvt_pk_bf16_f32 v{FR+i}, v{ACC+2*i}, v{ACC+2*i+1}")
    for i in range(4): a(f"buffer_store_dwordx4 {vr(FR+4*i,4)}, v5, s[24:27], 0 offen offset:{16*i}")
    a.stamp_out(2, 4, 4)
    a("s_endpgm")
    a.label("K3_EPI")
    a(f"s_sub_u32 s16, s2, {K3_NG}", "s_lshl_b32 s16, s16, 2", "s_add_u32 s16, s16, s18")
    a("s_mul_hi_u32 s17, s16, 0x55555556", "s_mul_i32 s19, s17, 3", "s_sub_u32 s16, s16, s19")
    a("s_bfe_u32 s19, s17, 0x10006", "s_lshl_b32 s20, s19, 10",
      "s_bfe_u32 s19, s17, 0x30001", "s_lshl_b32 s19, s19, 7", "s_add_u32 s20, s20, s19",
      "s_bfe_u32 s19, s17, 0x10005", "s_lshl_b32 s19, s19, 6", "s_add_u32 s20, s20, s19",
      "s_bfe_u32 s19, s17, 0x10004", "s_lshl_b32 s19, s19, 4", "s_add_u32 s20, s20, s19",
      "s_and_b32 s19, s17, 1", "s_lshl_b32 s19, s19, 3", "s_add_u32 s20, s20, s19")
    a("s_mul_i32 s19, s16, 384")
    a("s_mul_i32 s21, s20, 1152", "s_add_u32 s21, s21, s19", "s_mul_i32 s22, s20, 2304", "s_add_u32 s22, s22, s19")
    a("v_mul_u32_u24 v3, 1152, v13", "v_lshl_add_u32 v3, v12, 2, v3", "v_add_u32 v3, s21, v3")
    a("v_mul_u32_u24 v4, 2304, v13", "v_lshl_add_u32 v4, v12, 2, v4", "v_add_u32 v4, s22, v4")
    a(f"s_mul_i32 s19, s16, {24*32768}", "s_lshl_b32 s21, s17, 8", "s_add_u32 s19, s19, s21",
      "v_lshrrev_b32 v5, 2, v12", "v_lshlrev_b32 v5, 15, v5", "v_and_b32 v6, 3, v12", "v_lshl_add_u32 v5, v6, 5, v5", "v_lshl_add_u32 v5, v13, 7, v5",
      "v_add_u32 v5, s19, v5")
    a("s_waitcnt lgkmcnt(0)")
    a.srd(24, 4, WS_Y, 2359296); a.srd(28, 6, 0, 2359296); a.srd(32, 10, 0, 4718592)
    rows = [0, 2, 4, 6, 32, 34, 36, 38]
    for i in range(3):
        b = 16 + 16 * i
        a(f"s_mov_b32 s19, {i*8*32768}", f"buffer_load_dwordx4 {vr(b,4)}, v5, s[24:27], s19 offen", f"buffer_load_dwordx4 {vr(b+4,4)}, v5, s[24:27], s19 offen offset:16")
        for j, r in enumerate(rows):
            a(f"s_mov_b32 s19, {r*1152}", f"buffer_load_dword v{b+8+j}, v3, s[28:31], s19 offen offset:{128*i}")
    a("s_mov_b32 s20, 0xffff0000")
    for i in range(3):
        b = 16 + 16 * i
        a(f"s_waitcnt vmcnt({10*(2-i) + 8*i})")
        a.stamp(1 + i)
        for j, r in enumerate(rows):
            t = 64 + 6 * (j & 1)
            for e in range(2):
                src = b + 4 * e + (j >> 1)
                a(f"v_lshlrev_b32 v{t+e}, 16, v{src}" if j % 2 == 0 else f"v_and_b32 v{t+e}, s20, v{src}")
            a(f"v_lshlrev_b32 v{t+2}, 16, v{b+8+j}", f"v_and_b32 v{t+3}, s20, v{b+8+j}",
              f"v_pk_mul_f32 {vr(t,2)}, {vr(t,2)}, {vr(t+2,2)}", f"v_cvt_pk_bf16_f32 v{b+8+j}, v{t}, v{t+1}",
              f"s_mov_b32 s19, {r*2304}", f"buffer_store_dword v{b+8+j}, v4, s[32:35], s19 offen offset:{128*i}")
    a.stamp_out(2, 4, 4)
    a.label("K3_END")
    a("s_endpgm")
```

```python
from gen4 import *

def gen_a(a):
    O, V, Km, Kt, Qm, Qt = R["O"], R["V"], R["Km"], R["Kt"], R["Qm"], R["Qt"]
    a.label("L_ATT")
    a("s_sub_u32 s18, s18, 8", "s_and_b32 s21, s18, 1")
    rot(a, "s39", "s38")
    x_frag_addr(a, 44, "s21", 43)
    a("s_lshl_b32 s38, s39, 13")
    for i in range(4): a(f"v_add_u32 v{44+i}, s38, v{44+i}")
    tr_lane(a, 48, 144, 49, 50, True)
    a("v_lshlrev_b32 v50, 4, v50", "v_lshl_add_u32 v50, v49, 3, v50", "v_cmp_eq_u32 vcc, 3, v49", "s_lshr_b32 s40, s18, 1", "s_mul_i32 s38, s40, 36",
      "v_cndmask_b32 v50, v50, 32, vcc", "s_and_b32 s41, s40, 1", "s_lshl_b32 s42, s41, 2", "s_sub_u32 s38, s38, s42", f"s_add_u32 s38, s38, {W_B}",
      "v_add3_u32 v48, v48, v50, s38")
    a("s_waitcnt lgkmcnt(0)", "s_mov_b32 s4, s6", "s_mov_b32 s5, s7", "s_barrier")
    FR = 24
    QF, QD = 56, E("QD", 5)
    def q_reads(i):
        p, ksl = i // 4, i % 4
        if ksl == 0:
            a.lwait(M_CW + 4 * p, 8 if p == 0 else 5, slp=1)
            if p == 0: a.stamp(1)
            if QST and p in (3, 6, 8): a.stamp(4 + (3, 6, 8).index(p))
            if p in (1, 2): a.arrive(M_D0 + 4 * (p - 1))
        b = QF + 8 * (i % QD)
        o = (p % 7) * 9216 + ksl * 2304
        a(f"ds_read_b128 {vr(b,4)}, v{44+ksl}", f"ds_read_b64_tr_b16 {vr(b+4,2)}, v48 offset:{o}", f"ds_read_b64_tr_b16 {vr(b+6,2)}, v48 offset:{o+144}")
        if ksl == 3 and p < 8:
            next_chunk(a, "s39", [("s38", 8192)])
            for t in range(4): a(f"v_add_u32 v{44+t}, s38, v{44+t}")
    for i in range(QD - 1): q_reads(i)
    for i in range(36):
        if i + QD - 1 < 36: q_reads(i + QD - 1)
        a(f"s_waitcnt lgkmcnt({3 * min(QD - 1, 35 - i)})")
        b = QF + 8 * (i % QD)
        a(mfma(8, b + 4, b, "0" if i == 0 else None))
    a.arrive(M_QDONE)
    a("s_waitcnt vmcnt(0)")
    a.stamp(2)
    a("v_lshlrev_b32 v4, 4, v2", "v_lshlrev_b32 v5, 2, v2", "v_lshlrev_b32 v6, 4, v1", "v_mul_u32_u24 v123, 304, v3", "v_add_u32 v6, v6, v123",
      "v_mov_b32 v123, 0x40000", "v_cmp_lt_u32 vcc, 18, v1", "v_mov_b32 v7, 0xdddddddd", f"v_mov_b32 v{Kt+1}, 0x3f80", "v_cndmask_b32 v6, v6, v123, vcc")
    for i in range(16): a(f"v_mov_b32 v{O+i}, 0")
    a(f"s_mov_b32 s38, {f32bits(QSCALE)}")
    for i in range(16): a(f"v_mul_f32 v{8+i}, s38, v{8+i}")
    a("s_cmp_eq_u32 s41, 1", "s_cbranch_scc1 L_QODD")
    for i in range(4): a(f"v_cvt_pk_bf16_f32 v{Qm+i}, v{8+2*i}, v{9+2*i}")
    a(f"v_cvt_pk_bf16_f32 v{Qt}, v20, v21", "s_branch L_QDONE")
    a.label("L_QODD")
    for i in range(4): a(f"v_cvt_pk_bf16_f32 v{Qm+i}, v{10+2*i}, v{11+2*i}")
    a(f"v_cvt_pk_bf16_f32 v{Qt}, v22, v23")
    a.label("L_QDONE")
    a("v_cmp_eq_u32 vcc, 0, v3", "v_mov_b32 v123, 0", "s_nop 0", f"v_cndmask_b32 v124, 0, v{Qt}, vcc")
    for r in [Qm, Qm + 1, Qm + 2, Qm + 3, 124]: a(f"v_dot2_f32_bf16 v123, v{r}, v{r}, v123")
    a("s_nop 2", "v_mov_b32 v124, v123", "s_nop 1", "v_permlane32_swap_b32 v123, v124", "s_nop 1", "v_add_f32 v123, v123, v124")
    a.lwait(M_KVPROG, 2, "s43", slp=1)
    a.stamp(3)
    a(f"ds_read_b32 v122, v{VM} offset:{M_KMAX}")
    a(f"ds_read_b32 v{Kt}, v5 offset:2048", f"ds_read_b128 {vr(Km,4)}, v4", f"ds_read_b128 {vr(Km+4,4)}, v4 offset:1024")
    for f in range(4): a(f"ds_read_b128 {vr(V+4*f,4)}, v6 offset:{2304 + 608*f}")
    a("s_waitcnt lgkmcnt(4)")
    a(mfma(SX, Km, Qm, "0"), mfma(SX + 16, Km + 4, Qm, "0"))
    a(f"ds_read_b128 {vr(Km,4)}, v4 offset:{REC}", f"ds_read_b128 {vr(Km+4,4)}, v4 offset:{REC + 1024}")
    a("v_mul_f32 v123, v122, v123", "v_sqrt_f32 v123, v123", f"s_mov_b32 s38, {f32bits(32.0)}", f"v_mul_f32 v123, {f32bits(1.01)}, v123",
      "v_cmp_nge_f32 vcc, s38, v123", f"v_cvt_pk_bf16_f32 v{Qt+1}, -v123, 0", "s_cmp_lg_u64 vcc, 0", "s_cbranch_scc1 L_SLOW")
    a(f"v_mfma_f32_32x32x4_2b_bf16 {vr(SX,32)}, {vr(Kt,2)}, {vr(Qt,2)}, {vr(SX,32)}")
    a(f"ds_read_b32 v{Kt}, v5 offset:{REC + 2048}", "s_setprio 2")
    def kvcheck(need):
        l = a.uid("KC")
        a(f"s_cmp_ge_u32 s43, {need}", f"s_cbranch_scc1 {l}")
        a.lwait(M_KVPROG, need, "s43", slp=1)
        a.label(l)
    kvcheck(4)
    a.nop(16)
    a("s_waitcnt lgkmcnt(0)")
    TOG = E("TOG", 1)
    def trip(first):
        body = []
        for r in range(4):
            it = attn_iter(R, SX if r % 2 == 0 else SY, SY if r % 2 == 0 else SX, r * REC, pv11_prev=(r > 0 or not first))
            if r == 1 and TOG:
                k = len(it) * E("TOGP", 33) // 100
                l = a.uid("TG")
                it = it[:k] + ["s_cmp_lt_u32 s18, 4", f"s_cbranch_scc1 {l}", "s_setprio 3", f"{l}:"] + it[k:]
            body.append(it)
        return body
    def lowprio():
        if TOG:
            l = a.uid("TL")
            a("s_cmp_lt_u32 s18, 4", f"s_cbranch_scc1 {l}", "s_setprio 1"); a.label(l)
    lowprio()
    for r, it in enumerate(trip(True)):
        if r == 2: kvcheck(6)
        a(it)
    a("s_mov_b32 s44, 1", "s_mov_b32 s45, 10")
    a(".p2align 6")
    a.label("L_LOOP")
    a(f"v_add_u32 v4, {4*REC}, v4", f"v_add_u32 v5, {4*REC}, v5", f"v_add_u32 v6, {4*REC}, v6")
    kvcheck("s45")
    a("s_add_u32 s45, s45, 4", "s_min_u32 s45, s45, 32")
    lowprio()
    a("s_cmp_lg_u32 s44, 3", "s_cbranch_scc1 L_P3")
    a.arrive(M_PASS3)
    a.label("L_P3")
    a("s_cmp_lg_u32 s44, 5", "s_cbranch_scc1 L_P1")
    a.arrive(M_PASS)
    if not TOG: a("s_setprio 1")
    a.label("L_P1")
    if not TOG:
        a(f"s_cmp_lt_u32 s44, {E('AP0', 7)}", "s_cbranch_scc1 L_P0", "s_setprio 0")
        a.label("L_P0")
    for r, it in enumerate(trip(False)):
        a(it)
        if r == 0:
            a("s_cmp_lg_u32 s44, 1", "s_cbranch_scc1 L_P2")
            a.arrive(M_PASS2)
            a.label("L_P2")
    a("s_add_u32 s44, s44, 1", "s_cmp_lt_u32 s44, 8", "s_cbranch_scc1 L_LOOP")
    a("s_waitcnt lgkmcnt(0)")
    a(f"v_smfmac_f32_32x32x32_bf16 {vr(O,16)}, {vr(V+12,4)}, {vr(SY+24,8)}, v7")
    a.label("L_FIN")
    a("s_setprio 3")
    a.arrive(M_ADONE)
    if not QST: a.stamp(4)
    a("s_load_dwordx2 s[10:11], s[0:1], 88")
    a("s_lshl_b32 s22, s16, 3", "s_add_u32 s22, s22, s17", "s_mul_i32 s22, s22, 9216", f"s_add_u32 s22, s22, {WS_O}")
    a.srd(24, 4, "s22", 9216)
    a("s_lshl_b32 s36, s21, 2", "s_add_u32 s36, s36, s40", "s_lshl_b32 s36, s36, 10",
      "s_lshl_b32 s37, s40, 2", "s_lshl_b32 s23, s21, 9", "s_add_u32 s37, s37, s23", "s_add_u32 s37, s37, 8192")
    a("s_lshl_b32 s22, s16, 10", "s_lshl_b32 s23, s17, 7", "s_add_u32 s22, s22, s23", "s_lshl_b32 s23, s18, 4", "s_add_u32 s22, s22, s23", f"s_add_u32 s22, s22, {WS_FO}")
    a.srd(28, 4, "s22", 16)
    a("v_lshlrev_b32 v4, 4, v2", "v_lshlrev_b32 v5, 2, v2")
    a(f"v_mov_b32 v8, v{O+10}", f"v_mov_b32 v9, v{O+10}", "s_nop 1", "v_permlane32_swap_b32 v8, v9", "s_nop 1", "v_rcp_f32 v8, v8", "s_nop 0")
    for i in range(10): a(f"v_mul_f32 v{O+i}, v8, v{O+i}")
    for i in range(5): a(f"v_cvt_pk_bf16_f32 v{24+i}, v{O+2*i}, v{O+2*i+1}")
    a(f"ds_read_b32 v29, v{VM} offset:{M_NONCE}")
    a.lwait(M_PZ, 1, "s45", slp=1)
    a("s_cmp_eq_u32 s45, 2", "s_cbranch_scc1 L_OFAST")
    a("buffer_store_dwordx4 v[24:27], v4, s[24:27], s36 offen sc1", "s_mov_b32 exec_hi, 0", "buffer_store_dword v28, v4, s[24:27], s37 offen sc1", "s_branch L_OST")
    a.label("L_OFAST")
    a("buffer_store_dwordx4 v[24:27], v4, s[24:27], s36 offen", "s_mov_b32 exec_hi, 0", "buffer_store_dword v28, v4, s[24:27], s37 offen")
    a.label("L_OST")
    a("s_mov_b32 exec_hi, -1")
    a("s_mul_i32 s22, s17, 9216", f"s_add_u32 s22, s22, {O_B}", "s_add_u32 s36, s36, s22", "v_add_u32 v30, s36, v4",
      "s_lshl_b32 s23, s21, 9", "s_add_u32 s22, s22, s23", "s_lshl_b32 s23, s40, 2", "s_add_u32 s22, s22, s23", "s_add_u32 s22, s22, 8192", "v_add_u32 v31, s22, v4",
      "s_lshl_b32 s22, s17, 2", f"v_add_u32 v32, s22, v{VM}", "v_and_b32 v33, 7, v2", f"v_lshl_add_u32 v33, v33, 2, v{VM}")
    a("s_mov_b64 exec, 1", "s_waitcnt vmcnt(0)", "s_cmp_eq_u32 s45, 2", "s_cbranch_scc1 L_FFAST", "buffer_store_dword v29, v4, s[28:31], 0 offen sc1", "s_branch L_FST")
    a.label("L_FFAST")
    a("buffer_store_dword v29, v4, s[28:31], 0 offen")
    a.label("L_FST")
    a("s_mov_b64 exec, -1")
    if not QST: a.stamp(5)
    tr_lane(a, 48, 144, 34, 35, True)
    a("s_lshr_b32 s38, s18, 1", "s_cmp_ge_u32 s18, 4", "s_cselect_b32 s39, 0, 8", "s_cselect_b32 s41, 8, 32", "s_cselect_b32 s42, 2, s38",
      "s_and_b32 s46, s38, 1", "s_lshl_b32 s47, 0x55, s46", "s_cmp_ge_u32 s18, 4", "s_cselect_b32 s46, s46, 0", "s_cselect_b32 s47, s47, 0xff",
      "v_mul_u32_u24 v34, s39, v34", "v_mul_u32_u24 v35, s41, v35", "s_lshl_b32 s38, s42, 6", "v_add3_u32 v34, v34, v35, s38", "v_add_u32 v48, v48, v34",
      "v_mul_u32_u24 v35, 144, v3", "v_sub_u32 v49, v48, v35", f"v_add_u32 v49, {512*144}, v49",
      "s_lshl_b32 s38, s21, 12", f"s_add_u32 s38, s38, {O_B}", "v_add_u32 v50, s38, v4",
      "s_lshl_b32 s38, s21, 9", f"s_add_u32 s38, s38, {O_B + 8192}", "v_lshlrev_b32 v51, 4, v1", "v_lshl_add_u32 v51, v3, 3, v51", "v_add_u32 v51, s38, v51")
    a("s_lshl_b32 s38, s16, 1", "s_add_u32 s38, s38, s21", f"s_mul_i32 s38, s38, {32*2304}", "s_mul_i32 s39, s17, 144", "s_add_u32 s38, s38, s39",
      "s_lshl_b32 s39, s42, 6", "s_add_u32 s38, s38, s39", "s_add_u32 s38, s38, 1152")
    a.srd(32, 10, "s38", 31 * 2304 + 64)
    a("v_mul_u32_u24 v46, 2304, v1", "v_mul_u32_u24 v47, s41, v3", "v_add_u32 v46, v46, v47")
    for i in range(16): a(f"v_mov_b32 v{8+i}, 0")
    a.lwait(M_ADONE, 8, slp=1)
    a("ds_write_b128 v30, v[24:27]", "s_mov_b32 exec_hi, 0", "ds_write_b32 v31, v28", "s_mov_b64 exec, 1", f"ds_add_u32 v32, v{VONE} offset:{M_OC}", "s_mov_b64 exec, -1")
    a.lwait(M_WO, 1, slp=1)
    if not QST: a.stamp(6)
    BUF = (52, 88)
    def mm(b):
        for k in range(4): a(mfma(8, b + 8 * k + 4, b + 8 * k))
        a(f"v_mfma_f32_32x32x8_bf16 v[8:23], {vr(b+34,2)}, {vr(b+32,2)}, v[8:23]")
    a("s_mov_b32 s48, 0", "s_mov_b32 s49, 0")
    a.label("L_OG")
    for h in range(2):
        b, pb = BUF[h], BUF[1 - h]
        a("s_cmp_lg_u32 s48, 0", f"s_cbranch_scc1 L_OGP{h}")
        a(f"ds_read_b32 v{VT}, v33 offset:{M_OC}", "s_waitcnt lgkmcnt(0)", f"v_cmp_le_u32 vcc, 8, v{VT}", "s_and_b32 s48, vcc_lo, s47", f"s_cbranch_scc1 L_OGP{h}")
        a("s_cmp_eq_u32 s49, 0", f"s_cbranch_scc1 L_OGS{h}")
        mm(pb)
        a("s_mov_b32 s49, 0")
        a.label(f"L_OGS{h}")
        a(f"ds_read_b32 v{VT}, v33 offset:{M_OC}", "s_waitcnt lgkmcnt(0)", f"v_cmp_le_u32 vcc, 8, v{VT}", "s_and_b32 s48, vcc_lo, s47", f"s_cbranch_scc1 L_OGP{h}", f"s_sleep {E('OSLP', 1)}", f"s_branch L_OGS{h}")
        a.label(f"L_OGP{h}")
        a("s_ff1_i32_b32 s50, s48", "s_bitset0_b32 s48, s50", "s_bitset0_b32 s47, s50", "s_mul_i32 s51, s50, 9216", "s_lshr_b32 s38, s50, 1", "s_mul_i32 s38, s38, 2304",
          "s_and_b32 s39, s50, 1", "s_mul_i32 s39, s39, 288", "s_add_u32 s38, s38, s39",
          "v_add_u32 v40, s51, v48", "v_add_u32 v41, s51, v50", "v_add_u32 v42, s38, v49", "v_add_u32 v43, s51, v51")
        for k in range(4):
            a(f"ds_read_b128 {vr(b+8*k,4)}, v41 offset:{1024*k}", f"ds_read_b64_tr_b16 {vr(b+8*k+4,2)}, v40 offset:{2304*k}", f"ds_read_b64_tr_b16 {vr(b+8*k+6,2)}, v40 offset:{2304*k+144}")
        a(f"ds_read_b64 {vr(b+32,2)}, v43", f"ds_read_b64_tr_b16 {vr(b+34,2)}, v42")
        a("s_cmp_eq_u32 s49, 0", f"s_cbranch_scc1 L_OGN{h}", "s_waitcnt lgkmcnt(14)")
        mm(pb)
        a.label(f"L_OGN{h}")
        a("s_mov_b32 s49, 1", "s_cmp_eq_u32 s47, 0", f"s_cbranch_scc1 L_OGE{h}")
    a("s_branch L_OG")
    for h in range(2):
        a.label(f"L_OGE{h}")
        a("s_waitcnt lgkmcnt(0)")
        mm(BUF[h])
        if h == 0: a("s_branch L_OGD")
    a.label("L_OGD")
    a("s_cmp_ge_u32 s18, 4", "s_cbranch_scc1 L_NARROW")
    a.nop(10)
    for i in range(8): a(f"v_cvt_pk_bf16_f32 v{FR+i}, v{8+2*i}, v{9+2*i}")
    a(f"buffer_store_dwordx4 {vr(FR,4)}, v46, s[32:35], 0 offen {OPOL}", f"buffer_store_dwordx4 {vr(FR+4,4)}, v46, s[32:35], 0 offen offset:16 {OPOL}")
    a.end("a")
    a.label("L_NARROW")
    a("s_lshl_b32 s38, s21, 10", f"s_add_u32 s38, s38, {MISC + M_REDBUF}", "v_add_u32 v47, s38, v4", "s_lshl_b32 s39, s21, 2", f"v_add_u32 v{VM}, s39, v{VM}")
    a.nop(4)
    a("s_cmp_eq_u32 s46, 0", "s_cbranch_scc1 L_NARROW0")
    a("ds_write_b128 v47, v[8:11]")
    a.arrive(M_RED)
    a.end("a")
    a.label("L_NARROW0")
    a.lwait(M_RED, 1, slp=0)
    a("ds_read_b128 v[12:15], v47", "s_waitcnt lgkmcnt(0)")
    for i in range(4): a(f"v_add_f32 v{8+i}, v{8+i}, v{12+i}")
    a("v_cvt_pk_bf16_f32 v12, v8, v9", "v_cvt_pk_bf16_f32 v13, v10, v11", f"buffer_store_dwordx2 v[12:13], v46, s[32:35], 0 offen {OPOL}")
    a.end("a")
    a.label("L_SLOW")
    a.lwait(M_KVPROG, 32, "s43")
    a(f"v_mov_b32 v{Qt+1}, 0", "v_mov_b32 v123, 0xff800000", "v_mov_b32 v120, v4", "v_mov_b32 v121, v5")
    a.nop(12)
    def qk_slow():
        a(f"ds_read_b32 v{Kt}, v121 offset:2048", f"ds_read_b128 {vr(Km,4)}, v120", f"ds_read_b128 {vr(Km+4,4)}, v120 offset:1024")
        a("s_waitcnt lgkmcnt(0)")
        a(mfma(SX, Km, Qm, "0"), mfma(SX + 16, Km + 4, Qm, "0"))
        a.nop(10)
        a(f"v_mfma_f32_32x32x4_2b_bf16 {vr(SX,32)}, {vr(Kt,2)}, {vr(Qt,2)}, {vr(SX,32)}")
        a(f"v_add_u32 v120, {REC}, v120", f"v_add_u32 v121, {REC}, v121")
        a.nop(20)
    a("s_mov_b32 s44, 0")
    a.label("L_SLOW1")
    qk_slow()
    for i in range(16): a(f"v_max3_f32 v123, v123, v{SX+2*i}, v{SX+2*i+1}")
    a("s_add_u32 s44, s44, 1", "s_cmp_lt_u32 s44, 32", "s_cbranch_scc1 L_SLOW1")
    a("v_mov_b32 v124, v123", "s_nop 1", "v_permlane32_swap_b32 v123, v124", "s_nop 1", "v_max_f32 v123, v123, v124")
    a("v_mov_b32 v120, v4", "v_mov_b32 v121, v5", "s_mov_b32 s44, 0")
    a.label("L_SLOW2")
    for f in range(4): a(f"ds_read_b128 {vr(V+4*f,4)}, v6 offset:{2304 + 608*f}")
    qk_slow()
    a(f"v_add_u32 v6, {REC}, v6")
    for i in range(32): a(f"v_sub_f32 v{SX+i}, v{SX+i}, v123")
    for i in range(32): a(f"v_exp_f32 v{SX+i}, v{SX+i}")
    a("s_nop 1")
    for f in range(4): a(f"v_smfmac_f32_32x32x32_bf16 {vr(O,16)}, {vr(V+4*f,4)}, {vr(SX+8*f,8)}, v7")
    a("s_nop 7")
    a("s_add_u32 s44, s44, 1", "s_cmp_lt_u32 s44, 32", "s_cbranch_scc1 L_SLOW2")
    a.arrive(M_PASS2); a.arrive(M_PASS3); a.arrive(M_PASS)
    a("s_branch L_FIN")
```

```python
import sys, math, struct
from attn_core import attn_iter, REC, vr

NAME = "concat_heads__ssm_conv_h3__grouped_kv_mqa__prompt"
WS_Q    = 0x000000
WS_KV   = 0x240000
WS_KMAX = 0x265000
WS_HP   = 0x270000
WS_XI   = 0x300000
WS_O    = 0x780000
WS_Y    = 0x9C0000
KV_BYTES = 32 * REC
KA = dict(q=0, k=8, v=16, shk=24, ssk=32, ssd=40, x=48, wq=56, wk=64, wv=72, wo=80, out=88, dbg=96, ws=104)

def f32bits(x): return struct.unpack("<I", struct.pack("<f", x))[0]
QSCALE = math.log2(math.e) / math.sqrt(18.0)

import os
STAMP = int(os.environ.get("STAMP", "0"))
WS_ST = 0xD00000
class A:
    def __init__(s): s.L = []
    def stamp(s, i):
        if STAMP: s(f"s_memtime s[{64+4*i}:{65+4*i}]", f"s_memrealtime s[{66+4*i}:{67+4*i}]")
    def stamp_out(s, kidx, n, wpb):
        if not STAMP: return
        s("s_mov_b64 exec, -1", "s_waitcnt vmcnt(0) lgkmcnt(0)")
        s.stamp(n)
        s("s_waitcnt lgkmcnt(0)")
        s("v_lshrrev_b32 v1, 6, v0", "s_lshl_b32 s60, s2, 4", "v_add_u32 v1, s60, v1", "v_lshlrev_b32 v1, 6, v1")
        s.srd(56, 4, WS_ST + kidx * 0x40000, 0x40000)
        s("s_mov_b64 exec, 1")
        for i in range(n + 1):
            s(f"v_mov_b32 v2, s{64+4*i}", f"v_mov_b32 v3, s{66+4*i}", f"buffer_store_dwordx2 v[2:3], v1, s[56:59], 0 offen offset:{8*i}", "s_nop 1")
    def __call__(s, *lines):
        for l in lines:
            if isinstance(l, (list, tuple)): s.L.extend(l)
            else: s.L.append(l)
    def label(s, n): s.L.append(f"{n}:")
    def nop(s, n):
        while n > 0:
            k = min(n, 16); s.L.append(f"s_nop {k-1}"); n -= k
    def srd(s, d, base, off, nrec):
        if off is None or off == 0:
            s(f"s_mov_b32 s{d}, s{base}", f"s_mov_b32 s{d+1}, s{base+1}")
        else:
            s(f"s_add_u32 s{d}, s{base}, {off}", f"s_addc_u32 s{d+1}, s{base+1}, 0")
        s(f"s_mov_b32 s{d+2}, {nrec}", f"s_mov_b32 s{d+3}, 0x20000")

def kernel_head(a, name):
    a(f".globl {name}", ".p2align 8", f".type {name},@function", f"{name}:")

def kd(name, vgpr, sgpr=96):
    return [".p2align 6", f".amdhsa_kernel {name}", f"  .amdhsa_next_free_vgpr {vgpr}", f"  .amdhsa_next_free_sgpr {sgpr}",
            f"  .amdhsa_accum_offset {(vgpr + 3) // 4 * 4}", "  .amdhsa_group_segment_fixed_size 0", "  .amdhsa_kernarg_size 112",
            "  .amdhsa_user_sgpr_count 2", "  .amdhsa_user_sgpr_kernarg_segment_ptr 1", "  .amdhsa_system_sgpr_workgroup_id_x 1",
            "  .amdhsa_float_denorm_mode_32 3", ".end_amdhsa_kernel"]

def mfma(d, x, y, c=None):
    c = vr(d, 16) if c is None else c
    return f"v_mfma_f32_32x32x16_bf16 {vr(d,16)}, {vr(x,4)}, {vr(y,4)}, {c}"

def swap23(a, dst, src, t):
    a(f"v_and_b32 v{dst}, 0x13, v{src}",
      f"v_and_b32 v{t}, 4, v{src}", f"v_lshl_or_b32 v{dst}, v{t}, 1, v{dst}",
      f"v_and_b32 v{t}, 8, v{src}", f"v_lshrrev_b32 v{t}, 1, v{t}", f"v_or_b32 v{dst}, v{dst}, v{t}")

K1_NG = 160; K1_NP = 72; K1_GRID = K1_NG + K1_NP
K1_XR = 86016
K1_LDS = K1_XR + 4 * 16384

def w_tr_addr(a, dst0, lane, t0, t1, t2):
    a(f"v_lshrrev_b32 v{t0}, 5, v{lane}",
      f"v_lshlrev_b32 v{dst0}, 10, v{t0}",
      f"v_bfe_u32 v{t0}, v{lane}, 2, 2",
      f"v_lshl_add_u32 v{dst0}, v{t0}, 7, v{dst0}",
      f"v_lshrrev_b32 v{t0}, 1, v{t0}",
      f"v_lshl_add_u32 v{dst0}, v{t0}, 5, v{dst0}",
      f"v_and_b32 v{t0}, 1, v{lane}",
      f"v_lshl_add_u32 v{dst0}, v{t0}, 6, v{dst0}",
      f"v_bfe_u32 v{t0}, v{lane}, 4, 1",
      f"v_lshl_add_u32 v{dst0}, v{t0}, 4, v{dst0}",
      f"v_bfe_u32 v{t0}, v{lane}, 1, 1",
      f"v_lshl_add_u32 v{dst0}, v{t0}, 3, v{dst0}",
      f"v_xor_b32 v{dst0+1}, 32, v{dst0}",
      f"v_add_u32 v{dst0+2}, 0x8000, v{dst0}",
      f"v_add_u32 v{dst0+3}, 0x8000, v{dst0+1}")

def w_tr_read(dst, adr0, ks, t):
    hi = 1 if ks >= 16 else 0
    off = (ks - 16 * hi) * 2048
    ar = adr0 + 2 * hi + t
    return [f"ds_read_b64_tr_b16 {vr(dst,2)}, v{ar} offset:{off}", f"ds_read_b64_tr_b16 {vr(dst+2,2)}, v{ar} offset:{off+512}"]

def gen_k1(a):
    kernel_head(a, "k1_kernel")
    a(f"s_cmp_ge_u32 s2, {K1_GRID}", "s_cbranch_scc1 K1_END")
    a.stamp(0)
    a("s_load_dwordx2 s[4:5], s[0:1], 104")
    a(f"s_cmp_ge_u32 s2, {K1_NG}", "s_cbranch_scc1 K1_PREP")
    a("s_load_dwordx4 s[8:11], s[0:1], 48")
    a("s_load_dwordx4 s[12:15], s[0:1], 64")
    a("s_and_b32 s16, s2, 7", "s_lshr_b32 s17, s2, 3",
      "s_cmp_ge_u32 s17, 10", "s_cselect_b32 s18, 1, 0",
      "s_mul_i32 s19, s18, 10", "s_sub_u32 s17, s17, s19",
      "s_lshl_b32 s16, s16, 1", "s_add_u32 s16, s16, s18")
    a("v_lshrrev_b32 v1, 6, v0", "v_and_b32 v2, 63, v0", "s_nop 0", "v_readfirstlane_b32 s18, v1")
    a("v_lshrrev_b32 v5, 3, v2", "v_mul_u32_u24 v3, 1152, v5",
      "v_and_b32 v6, 7, v2", "v_lshrrev_b32 v7, 4, v2", "v_xor_b32 v7, v6, v7",
      "v_lshl_add_u32 v3, v7, 4, v3", "v_xor_b32 v4, 64, v3")
    a("v_and_b32 v12, 31, v2", "v_lshrrev_b32 v13, 5, v2",
      "v_bfe_u32 v7, v12, 1, 3", "v_xor_b32 v7, v7, v13", "v_lshlrev_b32 v8, 4, v7", "v_lshl_add_u32 v8, v12, 7, v8",
      "s_lshl_b32 s19, s18, 14", f"s_add_u32 s19, s19, {K1_XR}",
      "v_add_u32 v8, s19, v8", "v_xor_b32 v9, 32, v8", "v_xor_b32 v10, 64, v8", "v_xor_b32 v11, 96, v8")
    a("s_lshl_b32 s20, s16, 2", "s_add_u32 s20, s20, s18", "s_mul_i32 s21, s20, 36864")
    a("s_waitcnt lgkmcnt(0)")
    a.srd(24, 8, "s21", 36864)
    a("s_cmp_eq_u32 s17, 9", "s_cbranch_scc1 K1_KV")

    def xdma(c):
        L = []
        for q in range(4):
            L += [f"s_add_u32 m0, s19, {(c % 4) * 4096 + q * 1024}", f"s_mov_b32 s22, {q * 9216 + c * 128}",
                  f"buffer_load_dwordx4 v{3 + (q & 1)}, s[24:27], s22 offen lds"]
        return L

    def gemm_loop(wdma_counts, wdma, kstep_reads, kstep_mfma, nreads):
        order = []
        wi = 0
        for c in range(4):
            for _ in range(wdma_counts[c]):
                a(wdma(wi)); wi += 1; order.append(("w", c))
            a(xdma(c)); order += [("x", c)] * 4
        for _ in range(wdma_counts[4]):
            a(wdma(wi)); wi += 1; order.append(("w", 4))
        for c in range(9):
            need = max(i for i, (k, cc) in enumerate(order) if cc <= c)
            a(f"s_waitcnt vmcnt({len(order) - 1 - need})")
            if c <= 4: a("s_barrier")
            if c == 0: a.stamp(1)
            if c == 4: a.stamp(2)
            a(kstep_reads(4 * c, 0))
            for j in range(4):
                if j < 3:
                    a(kstep_reads(4 * c + j + 1, (j + 1) & 1))
                    a(f"s_waitcnt lgkmcnt({nreads})")
                else:
                    a("s_waitcnt lgkmcnt(0)")
                    if c + 4 < 9:
                        a(xdma(c + 4)); order += [("x", c + 4)] * 4
                a(kstep_mfma(4 * c + j, j & 1))

    ACC = 32; FR = 64
    def xread(ks, s):
        return [f"ds_read_b128 {vr(FR + 12 * s, 4)}, v{8 + (ks & 3)} offset:{((ks >> 2) & 3) * 4096}"]
    a("s_lshl_b32 s21, s17, 7", f"s_sub_u32 s23, {576 * 1152}, s21")
    a.srd(28, 10, "s21", "s23")
    a("v_lshrrev_b32 v5, 3, v2", "v_mul_u32_u24 v14, 1152, v5", "v_and_b32 v6, 7, v2", "v_bfe_u32 v7, v2, 4, 1",
      "v_lshlrev_b32 v7, 1, v7", "v_xor_b32 v7, v6, v7", "v_lshl_add_u32 v14, v7, 4, v14",
      "s_mul_i32 s21, s18, 18432", "v_add_u32 v14, s21, v14", "s_lshl_b32 s23, s18, 11")
    w_tr_addr(a, 16, 2, 5, 6, 7)
    def wdma_q(i):
        c, e = i // 2, i % 2
        return [f"s_add_u32 m0, s23, {(8 * c + e) * 1024}", f"s_mov_b32 s22, {(8 * c + e) * 9216}",
                "buffer_load_dwordx4 v14, s[28:31], s22 offen lds"]
    def reads_q(ks, s):
        return xread(ks, s) + w_tr_read(FR + 12 * s + 4, 16, ks, 0) + w_tr_read(FR + 12 * s + 8, 16, ks, 1)
    def mfma_q(ks, s):
        b = FR + 12 * s
        return [mfma(ACC, b + 4, b, "0" if ks == 0 else None), mfma(ACC + 16, b + 8, b, "0" if ks == 0 else None)]
    gemm_loop([2, 2, 2, 2, 10], wdma_q, reads_q, mfma_q, 5)
    a.stamp(3)
    a("s_mul_i32 s21, s20, 36864", "s_lshl_b32 s22, s17, 7", "s_add_u32 s21, s21, s22", f"s_add_u32 s21, s21, {WS_Q}")
    a.srd(24, 4, "s21", 36864)
    a("v_mul_u32_u24 v5, 1152, v12", "v_lshl_add_u32 v5, v13, 6, v5", f"s_mov_b32 s22, {f32bits(QSCALE)}")
    a.nop(8)
    for i in range(32): a(f"v_mul_f32 v{ACC + i}, s22, v{ACC + i}")
    for i in range(16): a(f"v_cvt_pk_bf16_f32 v{FR + i}, v{ACC + 2 * i}, v{ACC + 2 * i + 1}")
    for i in range(4): a(f"buffer_store_dwordx4 {vr(FR + 4 * i, 4)}, v5, s[24:27], 0 offen offset:{16 * i}")
    a.stamp_out(0, 4, 4)
    a("s_endpgm")
    a.label("K1_KV")
    a("s_cmp_ge_u32 s18, 2", "s_cselect_b32 s28, s14, s12", "s_cselect_b32 s29, s15, s13", "s_mov_b32 s30, 20736", "s_mov_b32 s31, 0x20000")
    a("s_and_b32 s21, s18, 1", "s_lshl_b32 s21, s21, 2", "v_lshlrev_b32 v14, 4, v2", "v_add_u32 v14, s21, v14", "s_mul_i32 s23, s18, 21504")
    a("v_lshrrev_b32 v5, 5, v2", "v_lshlrev_b32 v5, 3, v5", "v_bfe_u32 v6, v2, 2, 2", "v_add_u32 v5, v5, v6", "v_mul_u32_u24 v16, 36, v5",
      "v_and_b32 v6, 1, v6", "v_mul_u32_u24 v6, 21500, v6", "v_add_u32 v16, v16, v6",
      "v_and_b32 v5, 1, v2", "v_lshlrev_b32 v5, 4, v5", "v_bfe_u32 v6, v2, 1, 1", "v_lshl_add_u32 v5, v6, 3, v5",
      "v_and_b32 v6, 16, v2", "v_cmp_ne_u32 vcc, 0, v6", "s_nop 1", "v_cndmask_b32 v5, v5, 32, vcc", "v_add_u32 v16, v16, v5")
    def wdma_kv(i):
        return [f"s_add_u32 m0, s23, {i * 1024}", f"s_mov_b32 s22, {i * 1024}", "buffer_load_dwordx4 v14, s[28:31], s22 offen lds"]
    def reads_kv(ks, s):
        b = FR + 12 * s
        L = xread(ks, s)
        for mt in range(2):
            for p in range(2):
                L.append(f"ds_read_b64_tr_b16 {vr(b + 4 + 4 * mt + 2 * p, 2)}, v16 offset:{ks * 576 + p * 144 + mt * 43008}")
        return L
    def mfma_kv(ks, s):
        b = FR + 12 * s
        return [mfma(ACC, b + 4, b, "0" if ks == 0 else None), mfma(ACC + 16, b, b + 8, "0" if ks == 0 else None)]
    gemm_loop([3, 2, 2, 3, 11], wdma_kv, reads_kv, mfma_kv, 5)
    a.stamp(3)
    a("s_lshr_b32 s21, s20, 1", f"s_mul_i32 s21, s21, {REC}", f"s_add_u32 s21, s21, {WS_KV}", "s_and_b32 s22, s20, 1")
    a.srd(24, 4, "s21", REC)
    swap23(a, 5, 12, 6)
    a("s_lshl_b32 s23, s22, 10", "v_lshlrev_b32 v6, 4, v5", "v_lshl_add_u32 v6, v13, 9, v6", "v_add_u32 v6, s23, v6")
    a("s_lshl_b32 s23, s22, 7", "s_add_u32 s23, s23, 2048", "v_lshlrev_b32 v7, 2, v5", "v_add_u32 v7, s23, v7")
    a("s_mul_i32 s23, s22, 1216", "s_add_u32 s23, s23, 2304", "v_mul_u32_u24 v14, 304, v13", "v_lshl_add_u32 v14, v12, 4, v14", "v_add_u32 v14, s23, v14")
    a.nop(4)
    for i in range(5): a(f"v_cvt_pk_bf16_f32 v{FR + i}, v{ACC + 2 * i}, v{ACC + 2 * i + 1}")
    for i in range(8): a(f"v_cvt_pk_bf16_f32 v{FR + 8 + i}, v{ACC + 16 + 2 * i}, v{ACC + 16 + 2 * i + 1}")
    a(f"buffer_store_dwordx4 {vr(FR, 4)}, v6, s[24:27], 0 offen")
    a("v_cmp_eq_u32 vcc, 18, v12", "v_mov_b32 v15, 0x3f803f80", "s_nop 0")
    for i in range(8): a(f"v_cndmask_b32 v{FR + 8 + i}, v{FR + 8 + i}, v15, vcc")
    a("v_cmp_gt_u32 vcc, 19, v12", "s_and_saveexec_b64 s[32:33], vcc")
    a(f"buffer_store_dwordx4 {vr(FR + 8, 4)}, v14, s[24:27], 0 offen", f"buffer_store_dwordx4 {vr(FR + 12, 4)}, v14, s[24:27], 0 offen offset:608")
    a("s_mov_b32 exec_lo, -1", "s_mov_b32 exec_hi, 0")
    a(f"buffer_store_dword v{FR + 4}, v7, s[24:27], 0 offen")
    a("s_mov_b64 exec, -1")
    a("v_cmp_eq_u32 vcc, 0, v13", "v_mov_b32 v20, 0", "s_nop 0", f"v_cndmask_b32 v21, 0, v{FR + 4}, vcc")
    for r in [FR, FR + 1, FR + 2, FR + 3, 21]:
        a(f"v_dot2_f32_bf16 v20, v{r}, v{r}, v20")
    a("s_nop 2", "v_mov_b32 v21, v20", "s_nop 1", "v_permlane32_swap_b32 v20, v21", "s_nop 1", "v_add_f32 v20, v20, v21")
    for sh in (8, 4, 2, 1):
        a("s_nop 1", f"v_max_u32_dpp v20, v20, v20 row_ror:{sh} row_mask:0xf bank_mask:0xf")
    a("s_nop 0", "v_readlane_b32 s34, v20, 0", "v_readlane_b32 s35, v20, 16", "s_max_u32 s34, s34, s35")
    a.srd(24, 4, WS_KMAX, 256)
    a("s_lshl_b32 s35, s20, 2", "v_mov_b32 v20, s34", "v_mov_b32 v21, s35", "s_mov_b64 exec, 1", "buffer_store_dword v20, v21, s[24:27], 0 offen")
    a.stamp_out(0, 4, 4)
    a("s_endpgm")
    a.label("K1_PREP")
    a("s_load_dwordx4 s[8:11], s[0:1], 8")
    a("s_load_dwordx4 s[12:15], s[0:1], 24")
    a("s_load_dwordx2 s[6:7], s[0:1], 40")
    a(f"s_sub_u32 s16, s2, {K1_NG}", "s_and_b32 s17, s16, 7", "s_lshr_b32 s16, s16, 3")
    a("v_lshrrev_b32 v1, 6, v0", "v_and_b32 v2, 63, v0", "s_nop 0", "v_readfirstlane_b32 s18, v1")
    a("v_and_b32 v3, 31, v2", "v_lshrrev_b32 v4, 5, v2")
    a("s_lshl_b32 s19, s17, 2", "s_add_u32 s19, s19, s18",
      f"s_mul_i32 s20, s19, {64 * 1152}", "s_lshl_b32 s21, s16, 7", "s_add_u32 s20, s20, s21",
      f"v_mul_u32_u24 v5, {32 * 1152}, v4", "v_lshl_add_u32 v5, v3, 2, v5", "v_add_u32 v5, s20, v5",
      f"v_subrev_u32 v6, {4 * 1152}, v5")
    a("s_lshl_b32 s21, s16, 9", "v_lshlrev_b32 v7, 4, v3", "v_add_u32 v7, s21, v7")
    a("s_lshl_b32 s21, s16, 3", "s_add_u32 s21, s21, s17", "s_lshl_b32 s21, s21, 3",
      "v_lshrrev_b32 v8, 5, v0", "v_add_u32 v8, s21, v8",
      "v_lshlrev_b32 v9, 4, v3", "v_subrev_u32 v10, 236, v9", "v_max_i32 v10, 0, v10", "v_lshl_add_u32 v10, v8, 12, v10",
      "v_lshl_add_u32 v9, v8, 9, v9", "v_lshlrev_b32 v8, 1, v8")
    a("s_waitcnt lgkmcnt(0)")
    a.srd(24, 8, 0, 2359296); a.srd(28, 10, 0, 2359296); a.srd(32, 12, 0, 4608); a.srd(36, 14, 0, 2359296); a.srd(40, 6, 0, 1152)
    KR = 32; VR_ = 68; WR = 12; W8 = 16
    a(f"buffer_load_dwordx4 {vr(WR, 4)}, v7, s[32:35], 0 offen")
    nload = 1
    for i in range(4): a(f"buffer_load_dword v{KR + i}, v6, s[24:27], 0 offen offset:{1152 * i}")
    a(f"buffer_load_dword v{VR_}, v6, s[28:31], 0 offen offset:{1152 * 3}")
    nload += 5
    marks = {}
    for g in range(8):
        a(f"s_mov_b32 s22, {g * 4608}")
        for i in range(4):
            a(f"buffer_load_dword v{KR + 4 + 4 * g + i}, v5, s[24:27], s22 offen offset:{1152 * i}")
            a(f"buffer_load_dword v{VR_ + 1 + 4 * g + i}, v5, s[28:31], s22 offen offset:{1152 * i}")
        nload += 8
        marks[g] = nload
    a("buffer_load_dwordx4 v[104:107], v10, s[36:39], 0 offen", "buffer_load_ushort v108, v8, s[40:43], 0 offen")
    nload += 2
    a("s_mul_i32 s23, s18, 16896", "v_mul_u32_u24 v26, 528, v3", "v_xor_b32 v27, 1, v4", "v_lshl_add_u32 v26, v27, 7, v26", "v_add_u32 v26, s23, v26")
    a("v_mul_u32_u24 v27, 528, v4", "v_bfe_u32 v28, v2, 4, 1", "v_lshl_add_u32 v27, v28, 8, v27", "v_and_b32 v28, 15, v2", "v_lshl_add_u32 v27, v28, 4, v27", "v_add_u32 v27, s23, v27")
    a("v_lshrrev_b32 v29, 4, v2", "v_lshlrev_b32 v29, 13, v29", "v_lshl_add_u32 v29, v28, 4, v29")
    a("s_lshl_b32 s20, s16, 19", "s_lshl_b32 s21, s19, 8", f"s_sub_u32 s21, {248 * 32 + WS_XI}, s21", "s_add_u32 s20, s20, s21")
    a.srd(44, 4, "s20", 63 * 8192 + 256)
    a.srd(48, 4, WS_HP, 576 * 512)
    def wait_loads(n): a(f"s_waitcnt vmcnt({min(63, nload - n)})")
    wait_loads(marks[0])
    a.stamp(1)
    a("s_mov_b32 s22, 0xffff0000")
    for j in range(4):
        for e in range(2):
            src = WR + 2 * e + (j >> 1)
            a(f"v_lshlrev_b32 v{W8 + 2 * j + e}, 16, v{src}" if j % 2 == 0 else f"v_and_b32 v{W8 + 2 * j + e}, s22, v{src}")
    KU = 112
    VU = 120
    XV = 124
    CH = 144
    def unpack(dst, src): a(f"v_lshlrev_b32 v{dst}, 16, v{src}", f"v_and_b32 v{dst + 1}, s22, v{src}")
    for i in range(3): unpack(KU + 2 * (i % 4), KR + i)
    xv = lambda tau: XV + 2 * ((tau + 1) % 10)
    for tau in range(-1, 32):
        if tau >= 4 and tau % 4 == 0: wait_loads(marks[tau // 4])
        ki = tau + 4
        unpack(KU + 2 * (ki % 4), KR + ki)
        unpack(VU, VR_ + tau + 1)
        d = xv(tau)
        kk = lambda j: KU + 2 * ((ki - j) % 4)
        a(f"v_pk_mul_f32 {vr(d,2)}, {vr(kk(3),2)}, {vr(W8 + 6,2)}")
        for j in (2, 1, 0): a(f"v_pk_fma_f32 {vr(d,2)}, {vr(kk(j),2)}, {vr(W8 + 2 * j,2)}, {vr(d,2)}")
        a(f"v_pk_mul_f32 {vr(d,2)}, {vr(d,2)}, {vr(VU,2)}")
        if tau >= 0 and tau % 8 == 7:
            zl = tau // 8
            for e in range(2):
                for r in range(2):
                    cb_ = CH + 8 * e + 4 * r
                    for dd in range(4):
                        tl = 8 * zl + 6 + r - 2 * dd
                        a(f"v_cvt_pk_bf16_f32 v{cb_ + dd}, v{xv(tl) + e}, v{xv(tl - 1) + e}")
                    a(f"ds_write_b128 v26, {vr(cb_, 4)} offset:{e * 256 + (3 - zl) * 32 + 16 * r}")
    a.stamp(2)
    a("s_waitcnt vmcnt(0)")
    a("v_lshlrev_b32 v108, 16, v108", "v_lshlrev_b32 v109, 16, v104", "v_add_f32 v108, v108, v109", "v_and_b32 v109, s22, v104",
      "v_cvt_pk_bf16_f32 v108, v108, v109")
    a("v_cmp_lt_u32 vcc, 14, v3", "s_nop 1")
    for i in range(4): a(f"v_cndmask_b32 v{104 + i}, 0, v{104 + i}, vcc")
    a("v_cmp_eq_u32 vcc, 14, v3", "s_nop 1", "v_cndmask_b32 v107, v107, v108, vcc")
    a("buffer_store_dwordx4 v[104:107], v9, s[48:51], 0 offen")
    a.stamp(3)
    a("s_waitcnt lgkmcnt(0)")
    for i in range(16): a(f"ds_read_b128 {vr(32 + 4 * i, 4)}, v27 offset:{i * 1056}")
    for i in range(16):
        a(f"s_waitcnt lgkmcnt({15 - i})", f"s_mov_b32 s22, {i * 32768}", f"buffer_store_dwordx4 {vr(32 + 4 * i, 4)}, v29, s[44:47], s22 offen")
    a.stamp_out(0, 4, 4)
    a.label("K1_END")
    a("s_endpgm")

def build(parts=("k1", "k2", "k3")):
    import gen2
    hdr = open("cdna_kernels/" + NAME + ".s.ref").read().split("; Override launch")[0]
    a = A()
    L = [hdr.rstrip()]
    if "k1" in parts: L.append(f"; @launch kernel=k1_kernel grid=({K1_GRID},1,1) block=(256,1,1) lds={K1_LDS}")
    if "k2" in parts: L.append(f"; @launch kernel=k2_kernel grid=({gen2.K2_GRID},1,1) block=({gen2.K2_BLOCK},1,1) lds={gen2.K2_LDS}")
    if "k3" in parts: L.append(f"; @launch kernel=k3_kernel grid=({gen2.K3_GRID},1,1) block=(256,1,1) lds={gen2.K3_LDS}")
    L += ['.amdgcn_target "amdgcn-amd-amdhsa--gfx950"', ".text"]
    if "k1" in parts: gen_k1(a)
    if "k2" in parts: gen2.gen_k2(a)
    if "k3" in parts: gen2.gen_k3(a)
    L += [("  " + l if not l.endswith(":") and not l.startswith(".") else l) for l in a.L]
    L.append('.section .rodata,"a"')
    if "k1" in parts: L += kd("k1_kernel", 160)
    if "k2" in parts: L += kd("k2_kernel", gen2.K2_VGPR)
    if "k3" in parts: L += kd("k3_kernel", gen2.K3_VGPR)
    return "\n".join(L) + "\n"

if __name__ == "__main__":
    parts = sys.argv[2].split(",") if len(sys.argv) > 2 else ("k1", "k2", "k3")
    out = sys.argv[1] if len(sys.argv) > 1 else "cdna_kernels/" + NAME + ".s"
    open(out, "w").write(build(parts))
    print("wrote", out)
```

```python
import sys, os
from gen import A, kd, kernel_head, mfma, swap23, f32bits, QSCALE, NAME, STAMP, vr
from attn_core import attn_iter, REC

KV_BYTES = 32 * REC
WS_KV  = 0x000000
WS_FKV = 0x030000
WS_FO  = 0x040000
WS_FP  = 0x060000
WS_FY  = 0x04C000
WS_RDY = 0x052000
WS_O   = 0x0A0000
WS_Y   = 0x2E0000
WS_XI  = 0x640000
X_B = 23040; W_B = X_B + 73728; MISC = W_B + 64512; LDS_BYTES = 163840
SCR_B = 151552; O_B = 87552
M_CW = 0; M_D0 = 36; M_KVRED = 44; M_QDONE = 48; M_NONCE = 52; M_KVPROG = 56; M_KMAX = 60; M_PREP = 64; M_PASS3 = 68; M_PASS = 72
M_WO = 76; M_ADONE = 80; M_OPROG = 84; M_RED = 88; M_CONV = 96; M_SJ = 100; M_SR = 104; M_PASS2 = 108; M_REDBUF = 512
VM, VONE, VT = 125, 126, 127
NVGPR = 128
R = dict(O=72, idx=7, V=88, Km=104, Kt=112, Qm=116, Qt=114, aK=4, aT=5, aV=6)
SX, SY = 8, 40
POLL_MAX = 1 << 15
E = lambda k, d: int(os.environ.get(k, d))
NREP = E("NREP", 8)
ROT, QST, CONVD, LWIN, NOCONV = E("ROT", 1), E("QST", 0), E("CONVD", 2), E("LWIN", 3), E("NOCONV", 0)

class F(A):
    n = 0
    def uid(s, p):
        s.n += 1; return f"{p}_{s.n}"
    def arrive(s, off):
        s("s_mov_b64 exec, 1", f"ds_add_u32 v{VM}, v{VONE} offset:{off}", "s_mov_b64 exec, -1")
    def lwait(s, off, target, sreg="s60", slp=1):
        l = s.uid("LW")
        s.label(l)
        s(f"ds_read_b32 v{VT}, v{VM} offset:{off}", "s_waitcnt lgkmcnt(0)", f"v_readfirstlane_b32 {sreg}, v{VT}", f"s_cmp_ge_u32 {sreg}, {target}")
        if slp: s(f"s_cbranch_scc1 {l}_d", f"s_sleep {slp}", f"s_branch {l}"); s.label(l + "_d")
        else: s(f"s_cbranch_scc0 {l}")
    def lset(s, off, val):
        s(f"v_mov_b32 v{VT}, {val}", "s_mov_b64 exec, 1", f"ds_write_b32 v{VM}, v{VT} offset:{off}", "s_mov_b64 exec, -1")
    def nonce(s): s.lwait(M_NONCE, 1, "s61")
    def gpoll(s, voff, srd, slp, nl=64, soff="0", off=0):
        l = s.uid("GP")
        if nl < 64: s(f"s_mov_b32 exec_lo, {(1 << nl) - 1}", "s_mov_b32 exec_hi, 0")
        s("s_mov_b32 s62, 0")
        s.label(l)
        s(f"buffer_load_dword v{VT}, v{voff}, s[{srd}:{srd+3}], {soff} offen offset:{off} sc1", "s_add_u32 s62, s62, 1", "s_waitcnt vmcnt(0)",
          f"v_cmp_ne_u32 vcc, s61, v{VT}", "s_cmp_eq_u64 vcc, 0", f"s_cbranch_scc1 {l}_d", "s_mov_b64 exec, vcc",
          f"s_cmp_ge_u32 s62, {POLL_MAX}", f"s_cbranch_scc1 {l}_d", f"s_sleep {slp}", f"s_branch {l}")
        s.label(l + "_d")
        s("s_mov_b64 exec, -1")
    def broadcast(s, word_sreg, t):
        s("s_mul_i32 s58, s22, 58255", "s_lshr_b32 s58, s58, 16", f"v_lshlrev_b32 v{t}, 3, v1", f"v_add3_u32 v{t}, v{t}, v3, s58", f"v_lshlrev_b32 v{t}, 7, v{t}",
          f"v_mov_b32 v{VT}, s61", "s_cmp_eq_u32 s58, 7", "s_cselect_b32 exec_hi, 0, -1",
          f"buffer_store_dword v{VT}, v{t}, s[52:55], {word_sreg} offen sc1", "s_mov_b32 exec_hi, -1")
    def flag(s, off_sreg, srd, n=1):
        s(f"v_mov_b32 v{VT}, s61", f"v_lshlrev_b32 v{VT-3}, 4, v2", f"s_mov_b64 exec, {n}" if isinstance(n, str) else f"s_mov_b64 exec, {(1 << n) - 1}", "s_waitcnt vmcnt(0)",
          f"buffer_store_dword v{VT}, v{VT-3}, s[{srd}:{srd+3}], {off_sreg} offen sc1", "s_mov_b64 exec, -1")
    def end(s):
        s.stamp_out(0, 7, 8); s("s_endpgm")

def tr_lane(a, dst, stride, t0, t1, tp=False):
    if tp: a(f"v_and_b32 v{t0}, 12, v2", f"v_lshl_add_u32 v{t0}, v3, 1, v{t0}")
    else: a(f"v_bfe_u32 v{t0}, v2, 2, 2", f"v_lshl_add_u32 v{t0}, v3, 3, v{t0}")
    a(f"v_mul_u32_u24 v{dst}, {stride}, v{t0}",
      f"v_bfe_u32 v{t0}, v2, 4, 1", f"v_bfe_u32 v{t1}, v2, 1, 1", f"v_lshl_add_u32 v{t0}, v{t0}, 1, v{t1}", f"v_and_b32 v{t1}, 1, v2")

def x_dma_voff(a, d, t0, t1):
    a(f"v_lshrrev_b32 v{t0}, 3, v2", f"v_mul_u32_u24 v{d}, 1152, v{t0}", f"v_and_b32 v{t0}, 7, v2", f"v_lshrrev_b32 v{t1}, 4, v2", f"v_xor_b32 v{t0}, v{t0}, v{t1}",
      f"v_lshl_add_u32 v{d}, v{t0}, 4, v{d}")

def x_frag_addr(a, d, rowtile_sreg, t0):
    a(f"v_bfe_u32 v{t0}, v1, 1, 3", f"v_xor_b32 v{t0}, v{t0}, v3", f"v_lshlrev_b32 v{d}, 4, v{t0}", f"v_lshl_add_u32 v{d}, v1, 7, v{d}",
      f"s_lshl_b32 s60, {rowtile_sreg}, 12", f"s_add_u32 s60, s60, {X_B}", f"v_add_u32 v{d}, s60, v{d}")
    for i in (1, 2, 3): a(f"v_xor_b32 v{d+i}, {32*i}, v{d}")

def piece_decode(a, e, pos, c16, kk, t, magic):
    a(f"v_mul_u32_u24 v{pos}, {magic}, v{e}", f"v_lshrrev_b32 v{pos}, 16, v{pos}", f"v_mul_u32_u24 v{c16}, 9, v{pos}", f"v_sub_u32 v{c16}, v{e}, v{c16}",
      f"v_lshlrev_b32 v{c16}, 4, v{c16}", f"v_and_b32 v{kk}, 3, v{pos}", f"v_bfe_u32 v{t}, v{pos}, 2, 2", f"v_lshl_add_u32 v{kk}, v{kk}, 2, v{t}", f"v_lshrrev_b32 v{pos}, 4, v{pos}")

def next_chunk(a, c, delta_pairs=()):
    a(f"s_add_u32 {c}, {c}, 1", f"s_cmp_eq_u32 {c}, 9", f"s_cselect_b32 {c}, 0, {c}")
    for sreg, step in delta_pairs: a(f"s_movk_i32 {sreg}, {step}", f"s_cselect_b32 {sreg}, {(-8*step) & 0xffffffff}, {sreg}")

def rot(a, d, t):
    if ROT: a(f"s_lshl_b32 {d}, s20, 1", f"s_add_u32 {d}, {d}, s17", f"s_sub_u32 {t}, {d}, 9", f"s_cmp_ge_u32 {d}, 9", f"s_cselect_b32 {d}, {t}, {d}")
    else: a(f"s_mov_b32 {d}, 0")

def stream_positions(a, issue, per):
    for p in range(9 + LWIN):
        if p == E("BARAT", 1): a("s_barrier")
        if p < 9:
            if p >= 7: a.lwait(M_D0 + 4 * (p - 7), 8, slp=1)
            issue(p)
        q = p - LWIN
        if q >= 0:
            a(f"s_waitcnt vmcnt({per * (min(p, 8) - q)})"); a.arrive(M_CW + 4 * q)

def gen_h(a):
    a("s_cmp_ge_u32 s17, 4", "s_cbranch_scc1 L_NOWKV")
    x_dma_voff(a, 40, 41, 42)
    a("v_xor_b32 v41, 64, v40")
    a("s_and_b32 s21, s17, 1", "s_lshl_b32 s22, s16, 1", "s_add_u32 s22, s22, s21", "s_mul_i32 s22, s22, 36864", "s_mul_i32 s23, s18, 384", "s_add_u32 s36, s22, s23",
      "s_mul_i32 s37, s18, 24576", "s_lshl_b32 s23, s21, 12", "s_add_u32 s37, s37, s23", f"s_add_u32 s37, s37, {X_B}")
    a("s_movk_i32 s22, 6554")
    for i in range(5):
        a(f"v_add_u32 v6, {64*i}, v2", "v_mul_u32_u24 v7, s22, v6", "v_lshrrev_b32 v7, 16, v7", "v_sub_u32 v7, v2, v7", f"v_lshl_add_u32 v{8+i}, v7, 2, 64", f"v_add_u32 v{8+i}, 192, v{8+i}")
    a("s_mul_i32 s22, s18, 6912", "s_sub_u32 s22, s22, 256", "s_ashr_i32 s39, s22, 31", "s_mul_i32 s23, s18, 7680", "s_mul_i32 s38, s18, 24576")
    x_frag_addr(a, 44, "s21", 43)
    for i in range(4): a(f"v_add_u32 v{44+i}, s38, v{44+i}")
    a("s_waitcnt lgkmcnt(0)")
    a("s_cmp_ge_u32 s17, 2", "s_cselect_b32 s24, s14, s12", "s_cselect_b32 s25, s15, s13", "s_add_u32 s24, s24, s22", "s_addc_u32 s25, s25, s39",
      f"s_mov_b32 s26, {6912+256}", "s_mov_b32 s27, 0x20000")
    a.srd(28, 8, "s36", 31 * 1152 + 384)
    for c in range(3):
        for q in range(4):
            a(f"s_add_u32 m0, s37, {c*8192 + q*1024}", f"s_mov_b32 s38, {q*9216 + c*128}", f"buffer_load_dwordx4 v{40 + (q & 1)}, s[28:31], s38 offen lds")
        for g in range(2 * c, 2 * c + 2):
            a(f"s_add_u32 m0, s23, {g*1280}", f"s_movk_i32 s38, {g*1152}")
            for i in range(5): a(f"buffer_load_dword v{8+i}, s[24:27], s38 offen offset:{256*i} lds")
    a("s_barrier")
    a("s_mov_b32 s4, s6", "s_mov_b32 s5, s7")
    tr_lane(a, 48, 40, 49, 50)
    a("v_lshlrev_b32 v50, 4, v50", "v_lshl_add_u32 v50, v49, 3, v50", "v_cmp_lt_u32 vcc, 1, v49", "v_lshlrev_b32 v53, 4, v2", "v_add_u32 v57, s23, v53",
      "v_cndmask_b32 v50, v50, 32, vcc", "v_add3_u32 v48, v48, v50, s23")
    a(f"s_mul_i32 s22, s16, {REC}")
    a.srd(24, 4, "s22", REC)
    a.srd(28, 4, WS_FKV, 65536)
    swap23(a, 52, 1, 54)
    a.stamp(1); a.stamp(2)
    FR, QF, QD = 24, 64, 5
    def reads(i):
        b = QF + 8 * (i % QD)
        if i % 4 == 0: a(f"s_waitcnt vmcnt({14 * (2 - i // 4)})")
        if i == 8: a.arrive(M_CW); a.stamp(3)
        a(f"ds_read_b128 {vr(b,4)}, v{44 + i % 4} offset:{(i // 4) * 8192}", f"ds_read_b64_tr_b16 {vr(b+4,2)}, v48 offset:{i*640}",
          f"ds_read_b64_tr_b16 {vr(b+6,2)}, v48 offset:{i*640+160}")
    def proj(isv):
        for i in range(12):
            if i + QD - 1 < 12: reads(i + QD - 1)
            a(f"s_waitcnt lgkmcnt({3 * min(QD - 1, 11 - i)})")
            b = QF + 8 * (i % QD)
            c = "0" if i == 0 else None
            a(mfma(8, b, b + 4, c) if isv else mfma(8, b + 4, b, c))
    for i in range(QD - 1): reads(i)
    a("s_cmp_ge_u32 s17, 2", "s_cbranch_scc1 L_VP")
    proj(False)
    a("s_branch L_KVRED")
    a.label("L_VP")
    proj(True)
    a.label("L_KVRED")
    a("s_cmp_eq_u32 s18, 0", "s_cbranch_scc1 L_KVH0")
    a.nop(10)
    for i in range(4): a(f"ds_write_b128 v57, {vr(8+4*i,4)} offset:{1024*i}")
    a.arrive(M_KVRED)
    a("s_branch L_EPI")
    a.label("L_KVH0")
    a.stamp(4)
    a.nop(4)
    a.lwait(M_KVRED, 2, slp=0)
    for w in range(2):
        for i in range(4): a(f"ds_read_b128 {vr(64+16*w+4*i,4)}, v53 offset:{7680*(w+1) + 1024*i}")
    for w in range(2):
        a(f"s_waitcnt lgkmcnt({4 - 4*w})")
        for i in range(8): a(f"v_pk_add_f32 {vr(8+2*i,2)}, {vr(8+2*i,2)}, {vr(64+16*w+2*i,2)}")
    a.stamp(5)
    a("s_cmp_ge_u32 s17, 2", "s_cbranch_scc1 L_VPROJ")
    a("s_lshl_b32 s23, s21, 10", "v_lshlrev_b32 v54, 4, v52", "v_lshl_add_u32 v54, v3, 9, v54",
      "s_lshl_b32 s22, s21, 7", "s_add_u32 s22, s22, 2048", "v_lshlrev_b32 v55, 2, v52", "v_cmp_eq_u32 vcc, 0, v3", "v_mov_b32 v61, 0")
    for i in range(5): a(f"v_cvt_pk_bf16_f32 v{FR+i}, v{8+2*i}, v{9+2*i}")
    a(f"buffer_store_dwordx4 {vr(FR,4)}, v54, s[24:27], s23 offen sc1", "s_mov_b32 exec_hi, 0",
      f"buffer_store_dword v{FR+4}, v55, s[24:27], s22 offen sc1", "s_mov_b32 exec_hi, -1")
    a(f"v_cndmask_b32 v56, 0, v{FR+4}, vcc")
    for r in [FR, FR + 1, FR + 2, FR + 3, 56]: a(f"v_dot2_f32_bf16 v61, v{r}, v{r}, v61")
    a("s_nop 2", "v_mov_b32 v56, v61", "s_nop 1", "v_permlane32_swap_b32 v61, v56", "s_nop 1", "v_add_f32 v61, v61, v56")
    for sh in (8, 4, 2, 1): a("s_nop 1", f"v_max_u32_dpp v61, v61, v61 row_ror:{sh} row_mask:0xf bank_mask:0xf")
    a("s_nop 0", "v_readlane_b32 s22, v61, 0", "v_readlane_b32 s23, v61, 16", "s_max_u32 s22, s22, s23", "s_branch L_KVFLAG")
    a.label("L_VPROJ")
    a("s_mul_i32 s23, s21, 1216", "s_add_u32 s23, s23, 2304", "v_mul_u32_u24 v54, 304, v3", "v_lshl_add_u32 v54, v1, 4, v54",
      "v_cmp_eq_u32 vcc, 18, v1", "v_mov_b32 v55, 0x3f803f80", "v_cmp_gt_u32 s[40:41], 19, v1")
    for i in range(8): a(f"v_cvt_pk_bf16_f32 v{FR+i}, v{8+2*i}, v{9+2*i}")
    for i in range(8): a(f"v_cndmask_b32 v{FR+i}, v{FR+i}, v55, vcc")
    a("s_mov_b64 exec, s[40:41]", f"buffer_store_dwordx4 {vr(FR,4)}, v54, s[24:27], s23 offen sc1",
      f"buffer_store_dwordx4 {vr(FR+4,4)}, v54, s[24:27], s23 offen offset:608 sc1", "s_mov_b64 exec, -1", "s_mov_b32 s22, 0")
    a.label("L_KVFLAG")
    a.nonce()
    a("s_lshl_b32 s23, s16, 2", "s_add_u32 s23, s23, s17", "s_lshl_b32 s23, s23, 4", "v_lshlrev_b32 v56, 11, v2", "v_mov_b32 v58, s61", "v_mov_b32 v59, s22",
      f"s_mov_b32 exec_lo, {(1 << NREP) - 1}", "s_mov_b32 exec_hi, 0", "s_waitcnt vmcnt(0)", "buffer_store_dwordx2 v[58:59], v56, s[28:31], s23 offen sc1")
    a.stamp(6)
    a.end()
    a.label("L_NOWKV")
    a("s_waitcnt lgkmcnt(0)", "s_mov_b32 s4, s6", "s_mov_b32 s5, s7", "s_barrier")
    a.arrive(M_CW)
    a("s_cmp_lg_u32 s18, 0", "s_cbranch_scc1 L_EPI", "s_cmp_ge_u32 s17, 6", "s_cbranch_scc1 L_EPI")
    a("s_endpgm")
    a.label("L_EPI")
    if NOCONV: a.end()
    a("s_load_dwordx2 s[8:9], s[0:1], 0", "s_load_dwordx2 s[10:11], s[0:1], 88")
    a("s_sub_u32 s21, s18, 1", "s_lshl_b32 s21, s21, 5", "s_add_u32 s21, s21, s19",
      "s_lshl_b32 s22, s20, 1", "s_add_u32 s22, s22, s17", "s_add_u32 s22, s22, 58", "s_cmp_eq_u32 s18, 0", "s_cselect_b32 s21, s22, s21",
      "s_mul_i32 s22, s3, 72", "s_add_u32 s21, s21, s22", "s_lshr_b32 s22, s21, 6", "s_and_b32 s23, s21, 63")
    a.nonce()
    a.srd(52, 4, WS_RDY, 32768)
    a("v_lshlrev_b32 v110, 4, v2", "s_lshl_b32 s57, s22, 2")
    a.stamp(1)
    a("s_cmp_lg_u32 s23, 0", "s_cbranch_scc1 L_NOAGG1")
    a("s_lshl_b32 s37, s22, 11", f"s_add_u32 s37, s37, {WS_FP}")
    a.srd(24, 4, "s37", 2048)
    a.lwait(M_PREP, 4, slp=4)
    a.gpoll(110, 24, 2); a.gpoll(110, 24, 2, off=1024)
    a.broadcast("s57", 111)
    a.label("L_NOAGG1")
    a.stamp(2); a.stamp(3); a.stamp(4)
    a("s_lshl_b32 s37, s22, 11", f"s_add_u32 s37, s37, {WS_FY}")
    a.srd(24, 4, "s37", 2048)
    a("s_bfe_u32 s56, s23, 0x10005", "s_lshr_b32 s38, s23, 4", "s_lshl_b32 s38, s38, 9", "s_bfe_u32 s37, s23, 0x10003", "s_lshl_b32 s37, s37, 2", "s_add_u32 s38, s38, s37",
      "s_and_b32 s37, s23, 7", "s_lshl_b32 s37, s37, 5", "s_add_u32 s38, s38, s37")
    a("s_lshl_b32 s37, s22, 7", "s_mul_i32 s39, s38, 1152", "s_add_u32 s39, s39, s37", "s_mul_i32 s38, s38, 2304", "s_add_u32 s38, s38, s37")
    a("v_mul_u32_u24 v4, 9216, v3", "v_lshl_add_u32 v4, v1, 2, v4", "v_add_u32 v4, s39, v4",
      "v_mul_u32_u24 v5, 18432, v3", "v_lshl_add_u32 v5, v1, 2, v5", "v_add_u32 v5, s38, v5",
      "v_mul_u32_u24 v6, 12288, v1", "v_lshl_add_u32 v6, v3, 4, v6", "s_lshl_b32 s37, s23, 6", "v_add_u32 v6, s37, v6", "v_add_u32 v7, 6144, v6")
    a(f"s_mul_i32 s37, s22, {64*6144}", f"s_add_u32 s37, s37, {WS_Y}")
    a.srd(32, 4, "s37", 64 * 6144)
    a.srd(40, 8, 0, 2359296); a.srd(44, 10, 0, 4718592)
    a.lwait(M_CONV, 4, slp=32)
    rows = [0, 1, 2, 3, 256, 257, 258, 259]
    for i in range(2):
        for j, r in enumerate(rows): a(f"s_mov_b32 s37, {(r + 16*i)*1152}", f"buffer_load_dword v{64+8*i+j}, v4, s[40:43], s37 offen")
    a.stamp(5)
    a("s_add_u32 s57, s57, 64", "s_cmp_lg_u32 s23, 0", "s_cbranch_scc1 L_NOAGG2")
    a.gpoll(110, 24, 2); a.gpoll(110, 24, 2, off=1024)
    a.broadcast("s57", 111)
    a.label("L_NOAGG2")
    a("s_lshl_b32 s37, s2, 7", "s_add_u32 s37, s37, s57")
    a.gpoll(110, 52, 4, nl=1, soff="s37")
    a.stamp(6)
    for i in range(2):
        a(f"buffer_load_dwordx4 {vr(8+8*i,4)}, v6, s[32:35], 0 offen offset:{32*i} sc1", f"buffer_load_dwordx4 {vr(12+8*i,4)}, v7, s[32:35], 0 offen offset:{32*i} sc1")
    a("s_cmp_eq_u32 s56, 1", "s_cselect_b32 s37, 0, 0x1000000")
    for i in range(2):
        a(f"buffer_load_dwordx4 {vr(80+8*i,4)}, v6, s[32:35], s37 offen offset:{2048+32*i} sc1", f"buffer_load_dwordx4 {vr(84+8*i,4)}, v7, s[32:35], s37 offen offset:{2048+32*i} sc1")
    a("s_mov_b32 s36, 0xffff0000")
    for i in range(2):
        a(f"s_waitcnt vmcnt({2 if i == 0 else 8})")
        for j, r in enumerate(rows):
            t = 32 + 8 * (j & 1); q = 64 + 8 * i + j
            for e in range(2):
                for k, base in enumerate((8, 80)):
                    src = base + 8 * i + 4 * e + (j >> 1)
                    a(f"v_lshlrev_b32 v{t+4*k+e}, 16, v{src}" if j % 2 == 0 else f"v_and_b32 v{t+4*k+e}, s36, v{src}")
            a(f"v_lshlrev_b32 v{t+2}, 16, v{q}", f"v_and_b32 v{t+3}, s36, v{q}", f"v_pk_add_f32 {vr(t,2)}, {vr(t,2)}, {vr(t+4,2)}",
              f"v_pk_mul_f32 {vr(t,2)}, {vr(t,2)}, {vr(t+2,2)}",
              f"v_cvt_pk_bf16_f32 v{q}, v{t}, v{t+1}", f"s_mov_b32 s37, {(r + 16*i)*2304}", f"buffer_store_dword v{q}, v5, s[44:47], s37 offen")
    a.end()

def gen_l(a):
    a.label("L_LW")
    a("s_sub_u32 s18, s18, 4")
    x_dma_voff(a, 40, 41, 42)
    a("v_xor_b32 v41, 64, v40", "v_add_u32 v41, 8192, v41")
    a("s_movk_i32 s21, 7282", "s_lshl_b32 s22, s18, 7")
    for e in range(2):
        a(f"v_add_u32 v10, s22, v2" if e == 0 else "v_add_u32 v10, 64, v10")
        piece_decode(a, 10, 11, 12, 13, 14, "s21")
        a("v_lshl_add_u32 v13, v11, 4, v13", "v_mul_u32_u24 v13, 1152, v13", f"v_add_u32 v{42+e}, v13, v12")
    a("v_subrev_u32 v43, 1024, v43")
    rot(a, "s36", "s37")
    a("s_mul_i32 s22, s16, 73728", "s_mul_i32 s23, s18, 18432", "s_add_u32 s22, s22, s23", "s_lshl_b32 s47, s18, 11", f"s_add_u32 s37, s47, {W_B}", f"s_add_u32 s47, s47, {X_B}")
    a("s_lshr_b32 s38, s18, 1", "s_xor_b32 s38, s38, s17", "s_and_b32 s38, s38, 5", "s_cmp_eq_u32 s38, 0", "s_cselect_b64 s[48:49], 1, -1")
    a("s_mul_i32 s23, s17, 144", f"s_sub_u32 s38, {576*1152}, s23")
    a("s_waitcnt lgkmcnt(0)")
    a.srd(24, 8, "s22", 18432)
    a.srd(28, 10, "s23", "s38")
    a("s_mov_b32 s4, s6", "s_mov_b32 s5, s7", "s_load_dwordx2 s[14:15], s[0:1], 32", "s_load_dwordx2 s[12:13], s[0:1], 40",
      "s_load_dwordx4 s[8:11], s[0:1], 8", "s_load_dwordx2 s[6:7], s[0:1], 24", "s_setprio 2")
    def issue(p):
        a("s_lshl_b32 s38, s36, 13", "s_add_u32 m0, s47, s38", "s_lshl_b32 s38, s36, 7", "s_mov_b64 exec, s[48:49]",
          "buffer_load_dwordx4 v40, s[24:27], s38 offen lds", "buffer_load_dwordx4 v41, s[24:27], s38 offen offset:1024 lds",
          f"s_add_u32 m0, s37, {(p % 7) * 9216}", "s_mul_i32 s38, s36, 73728", "s_mov_b64 exec, -1",
          "buffer_load_dwordx4 v42, s[28:31], s38 offen lds", "buffer_load_dwordx4 v43, s[28:31], s38 offen offset:1024 lds")
        if p < 8: next_chunk(a, "s36")
    stream_positions(a, issue, 4)
    a("s_setprio 3")
    a.stamp(1)
    KR, VR_, WR, W8, KU, VU, XV, CH = 28, 40, 8, 12, 20, 48, 50, 56
    a.srd(24, 8, 0, 2359296); a.srd(28, 10, 0, 2359296); a.srd(32, 6, 0, 4608)
    a("s_mul_i32 s21, s3, 36", "s_add_u32 s21, s21, s19", "s_mov_b32 s43, 4")
    a("s_lshl_b32 s36, s18, 5", f"s_sub_u32 s36, {SCR_B + 112}, s36", "v_mul_u32_u24 v64, 288, v1", "v_lshlrev_b32 v65, 4, v3", "v_sub_u32 v64, v64, v65", "v_add_u32 v64, s36, v64",
      "s_mul_i32 s36, s18, 2304", f"s_add_u32 s36, s36, {SCR_B}", "v_lshrrev_b32 v66, 3, v2", "v_mul_u32_u24 v65, 144, v66", "v_and_b32 v67, 7, v2", "v_lshl_add_u32 v65, v67, 4, v65",
      "v_add_u32 v65, s36, v65", "v_lshlrev_b32 v66, 12, v66", "v_lshl_add_u32 v66, v67, 4, v66", "s_lshl_b32 s36, s18, 16", "v_add_u32 v66, s36, v66")
    a.nonce()
    a.lwait(M_KVPROG, E("PREPKV", 2), slp=2)
    a.label("L_PREP")
    a("s_lshr_b32 s22, s21, 5", "s_and_b32 s23, s21, 31")
    a("s_lshl_b32 s36, s23, 2", "s_add_u32 s36, s36, s18", "s_lshl_b32 s38, s36, 4", f"s_mul_i32 s36, s36, {16*1152}", "s_lshl_b32 s37, s22, 7", "s_add_u32 s36, s36, s37",
      f"v_mul_u32_u24 v5, {8*1152}, v3", "v_lshl_add_u32 v5, v1, 2, v5", "v_add_u32 v5, s36, v5", f"v_subrev_u32 v6, {3*1152}, v5",
      "s_lshl_b32 s37, s22, 9", "v_lshlrev_b32 v7, 4, v1", "s_movk_i32 s36, 4608")
    a(f"buffer_load_dwordx4 {vr(WR,4)}, v7, s[32:35], s37 offen")
    for i in range(3): a(f"buffer_load_dword v{KR+i}, v6, s[24:27], 0 offen offset:{1152*i}")
    for i in range(8):
        so = "s36" if i >= 4 else "0"
        a(f"buffer_load_dword v{KR+3+i}, v5, s[24:27], {so} offen offset:{1152*(i%4)}", f"buffer_load_dword v{VR_+i}, v5, s[28:31], {so} offen offset:{1152*(i%4)}")
    a("s_lshl_b32 s36, s22, 18", "s_lshl_b32 s37, s23, 7", f"s_sub_u32 s37, {3968 + WS_XI}, s37", "s_add_u32 s36, s36, s37")
    a.srd(52, 4, "s36", 63 * 4096 + 128)
    a("s_lshl_b32 s36, s22, 11", f"s_add_u32 s36, s36, {WS_FP}")
    a.srd(44, 4, "s36", 2048)
    a("s_waitcnt vmcnt(0)", "s_mov_b32 s36, 0xffff0000")
    for j in range(4):
        for e in range(2):
            src = WR + 2 * e + (j >> 1)
            a(f"v_lshlrev_b32 v{W8+2*j+e}, 16, v{src}" if j % 2 == 0 else f"v_and_b32 v{W8+2*j+e}, s36, v{src}")
    def unpack(dst, src): a(f"v_lshlrev_b32 v{dst}, 16, v{src}", f"v_and_b32 v{dst+1}, s36, v{src}")
    for i in range(3): unpack(KU + 2 * (i % 4), KR + i)
    for tau in range(8):
        ki = tau + 3
        unpack(KU + 2 * (ki % 4), KR + ki); unpack(VU, VR_ + tau)
        d = XV + 2 * (tau & 1); kk = lambda j: KU + 2 * ((ki - j) % 4)
        a(f"v_pk_mul_f32 {vr(d,2)}, {vr(kk(3),2)}, {vr(W8+6,2)}")
        for j in (2, 1, 0): a(f"v_pk_fma_f32 {vr(d,2)}, {vr(kk(j),2)}, {vr(W8+2*j,2)}, {vr(d,2)}")
        a(f"v_pk_mul_f32 {vr(d,2)}, {vr(d,2)}, {vr(VU,2)}")
        if tau & 1:
            for e in range(2): a(f"v_cvt_pk_bf16_f32 v{CH + 4*e + (7 - tau) // 2}, v{XV+2+e}, v{XV+e}")
    a("s_cmp_eq_u32 s43, 4", "s_cbranch_scc0 L_PREPR1")
    a.lwait(M_QDONE, 8, slp=1)
    a("s_branch L_PREPW")
    a.label("L_PREPR1")
    a.lwait(M_SR, 4, slp=1)
    a.label("L_PREPW")
    a(f"ds_write_b128 v64, {vr(CH,4)}", f"ds_write_b128 v64, {vr(CH+4,4)} offset:144")
    a.arrive(M_SJ)
    a.lwait(M_SJ, "s43", slp=1)
    a(f"ds_read_b128 {vr(CH,4)}, v65", f"ds_read_b128 {vr(CH+4,4)}, v65 offset:1152", "s_mov_b32 s36, 32768", "s_waitcnt lgkmcnt(0)")
    a(f"buffer_store_dwordx4 {vr(CH,4)}, v66, s[52:55], 0 offen sc1", f"buffer_store_dwordx4 {vr(CH+4,4)}, v66, s[52:55], s36 offen sc1")
    a.arrive(M_SR)
    a.flag("s38", 44)
    a("s_cmp_lg_u32 s43, 4", "s_cbranch_scc1 L_PREPD", "s_cmp_lt_u32 s19, 28", "s_cbranch_scc1 L_PREPD", "s_mov_b32 s43, 8", "s_add_u32 s21, s21, 4", "s_branch L_PREP")
    a.label("L_PREPD")
    a.arrive(M_PREP)
    a.stamp(2)
    a("s_lshl_b32 s21, s18, 5", "s_add_u32 s21, s21, s19", "s_cmp_ge_u32 s21, 108", "s_cbranch_scc1 L_CONVNONE")
    if NOCONV: a("s_branch L_CONVNONE")
    a("s_sub_u32 s22, s21, 72", "s_lshl_b32 s22, s22, 1", "s_cmp_ge_u32 s21, 72", "s_cselect_b32 s21, s22, s21", "s_cselect_b32 s57, 1, 0",
      "s_mul_i32 s22, s3, 72", "s_add_u32 s21, s21, s22", "s_lshr_b32 s22, s21, 6", "s_and_b32 s23, s21, 63")
    a("v_lshrrev_b32 v4, 3, v1", "v_lshlrev_b32 v4, 9, v4", "v_and_b32 v5, 7, v1", "v_lshl_add_u32 v4, v5, 1, v4", "v_lshl_add_u32 v4, v3, 4, v4",
      "s_lshl_b32 s36, s57, 11", "s_add_u32 s36, s36, 18", "v_add_u32 v4, s36, v4", "v_subrev_u32 v5, 32, v4")
    a("v_sub_u32 v6, 31, v1", "v_add_u32 v6, v6, v3", "v_lshlrev_b32 v6, 4, v6", "v_lshlrev_b32 v7, 4, v2",
      "s_mul_i32 s43, s18, 4608", "v_add_u32 v6, s43, v6")
    a("s_lshl_b32 s36, s21, 12", f"s_add_u32 s38, s36, {WS_XI}", "s_lshl_b32 s39, s22, 11", f"s_add_u32 s39, s39, {WS_FY}")
    a.srd(44, 14, "s36", 4096); a.srd(32, 4, "s38", 8192); a.srd(24, 4, "s39", 2048); a.srd(52, 4, WS_RDY, 32768); a.srd(48, 12, 0, 1152)
    a("s_mul_i32 s36, s21, 6144", f"s_add_u32 s36, s36, {WS_Y}")
    a.srd(28, 4, "s36", 12288)
    AF, AC, BR, D = 8, 72, 116, CONVD
    def aloads(special):
        for ph in range(1, 16): a(f"buffer_load_dwordx4 {vr(AF+4*ph,4)}, v4, s[44:47], 0 offen offset:{32*(ph-1)}")
        if not special:
            a(f"buffer_load_dwordx4 {vr(AF,4)}, v5, s[44:47], 0 offen")
            return
        for k in range(8): a(f"v_add_u32 v{AC+k}, {2*k}, v5", f"buffer_load_ushort v{AC+8+k}, v{AC+k}, s[44:47], 0 offen")
        a("s_lshl_b32 s36, s21, 1", f"v_mov_b32 v{AC+16}, 0", f"buffer_load_ushort v{AC+17}, v{AC+16}, s[48:51], s36 offen", f"buffer_load_ushort v{AC+18}, v{AC+16}, s[44:47], 0 offen",
          "s_waitcnt vmcnt(0)", f"v_lshlrev_b32 v{AC+17}, 16, v{AC+17}", f"v_lshlrev_b32 v{AC+18}, 16, v{AC+18}", f"v_add_f32 v{AC+17}, v{AC+17}, v{AC+18}",
          f"v_cvt_pk_bf16_f32 v{AC+17}, v{AC+17}, 0")
        for k in range(8): a(f"v_cmp_eq_u32 vcc, 0, v{AC+k}", "s_nop 1", f"v_cndmask_b32 v{AC+8+k}, v{AC+8+k}, v{AC+17}, vcc")
        for k in range(4): a(f"v_lshl_or_b32 v{AF+k}, v{AC+9+2*k}, 16, v{AC+8+2*k}")
    def zero(n):
        for k in range(n): a(f"v_mov_b32 v{AC+k}, 0")
    def run(nq, reload_a=False):
        seq = [(g, ph) for g in reversed(range(nq)) for ph in range(16)]
        def bload(i):
            g, ph = seq[i]
            a(f"ds_read_b128 {vr(BR + 4 * (i % D), 4)}, v6 offset:{32 * ph + (nq - 1 - g) * 512}")
        for i in range(D): bload(i)
        for i, (g, ph) in enumerate(seq):
            a(f"s_waitcnt lgkmcnt({min(D - 1, len(seq) - 1 - i)})")
            if i and i % 16 == 0: a.nop(8)
            a(mfma(AC + 4 * g, AF + 4 * ph, BR + 4 * (i % D)))
            if i + D < len(seq): bload(i + D)
            if reload_a and g == 0: a(f"buffer_load_dwordx4 {vr(AF+4*ph,4)}, v5, s[44:47], 0 offen offset:{32*ph}")
        a.nop(12)
    def ystore(npiece, soff):
        for k in range(4 * npiece): a(f"v_cvt_pk_bf16_f32 v{AC+k}, v{AC+2*k}, v{AC+2*k+1}")
        for k in range(npiece): a(f"buffer_store_dwordx4 {vr(AC+4*k,4)}, v7, s[28:31], {soff} offen offset:{1024*k} sc1")
    def ready(isq):
        a("s_lshl_b32 s37, s2, 7", "s_lshl_b32 s38, s22, 2", "s_add_u32 s37, s37, s38")
        a.lwait(M_PASS2, 8, slp=8)
        a.gpoll(7, 52, 6, nl=1, soff="s37")
        a("s_mov_b32 m0, s43", "s_movk_i32 s37, 6144", "s_mov_b32 s38, 0x100000")
        for k in range(4): a(f"buffer_load_dwordx4 v7, s[32:35], {'s37' if isq and k < 2 else '0'} offen offset:{1024*k} sc1 lds")
        a("s_add_u32 m0, s43, 4096", "s_mov_b32 exec_hi, 0", "buffer_load_dwordx4 v7, s[32:35], s38 offen lds", "s_mov_b32 exec_hi, -1", "s_waitcnt vmcnt(0)")
        a.stamp(3)
    a("s_cmp_eq_u32 s57, 1", "s_cbranch_scc1 L_CONVQ")
    aloads(True); zero(32); ready(False); run(8)
    a.stamp(4)
    ystore(4, "0")
    a("s_lshl_b32 s38, s23, 4", "s_mov_b64 s[50:51], 1", "s_branch L_CONVOUT")
    a.label("L_CONVQ")
    aloads(False); zero(16); ready(True)
    a("s_mov_b32 s41, 0", "s_movk_i32 s42, 4096", "s_add_u32 s44, s44, 4096", "s_addc_u32 s45, s45, 0", "v_add_u32 v6, 2048, v6")
    a.label("L_CONVQ2")
    run(4, True)
    ystore(2, "s42")
    a("s_cmp_eq_u32 s41, 1", "s_cbranch_scc1 L_CONVQD")
    a("s_mov_b32 s41, 1", f"s_movk_i32 s42, {4096+6144}", "s_mov_b32 s46, 0", "v_subrev_u32 v6, 2048, v6", f"v_lshl_add_u32 v{BR}, v2, 3, s43", "s_waitcnt vmcnt(0)")
    zero(16)
    a(f"ds_write_b64 v{BR}, {vr(AC,2)} offset:2048", "s_waitcnt lgkmcnt(0)", "s_branch L_CONVQ2")
    a.label("L_CONVQD")
    a.stamp(4)
    a("s_lshl_b32 s38, s23, 4", "s_add_u32 s38, s38, 1024", "s_mov_b64 s[50:51], 3")
    a.label("L_CONVOUT")
    a(f"v_mov_b32 v{VM}, {MISC}", f"v_mov_b32 v{VONE}, 1")
    a.flag("s38", 24, "s[50:51]")
    a.stamp(5); a.stamp(6)
    a.arrive(M_CONV)
    a.end()
    a.label("L_CONVNONE")
    a.arrive(M_CONV)
    a("s_endpgm")

def gen_loader(a):
    a.label("L_LOADER")
    a("s_memrealtime s[36:37]", "s_load_dwordx2 s[44:45], s[0:1], 80")
    a("v_mov_b32 v4, 0", f"v_lshl_add_u32 v5, v2, 2, v{VM}", "ds_write_b32 v5, v4", "v_lshlrev_b32 v6, 7, v2")
    a("s_movk_i32 s21, 7282", "v_add_u32 v10, 512, v2")
    piece_decode(a, 10, 11, 12, 13, 14, "s21")
    a("v_lshl_add_u32 v13, v11, 4, v13", "v_mul_u32_u24 v13, 1152, v13", "v_add_u32 v42, v13, v12")
    a("s_mul_i32 s21, s17, 144", f"s_sub_u32 s22, {576*1152}, s21")
    a("s_waitcnt lgkmcnt(0)")
    a.srd(24, 4, 0, 256)
    a("s_cmp_lg_u32 s2, 0", "s_cbranch_scc1 L_NONONCE")
    a("s_or_b32 s36, s36, 1", "v_mov_b32 v7, s36", "s_mov_b64 exec, 3", "buffer_store_dword v7, v6, s[24:27], 0 offen sc1", "s_mov_b64 exec, -1")
    a.label("L_NONONCE")
    a("s_mov_b32 s4, s6", "s_mov_b32 s5, s7")
    a.srd(48, 10, "s21", "s22")
    a.srd(40, 44, "s21", "s22")
    rot(a, "s36", "s37")
    a("s_barrier")
    def issue(p):
        a(f"s_mov_b32 m0, {W_B + (p % 7) * 9216 + 8192}", "s_mul_i32 s38, s36, 73728", "buffer_load_dwordx4 v42, s[48:51], s38 offen lds")
        if p < 8: next_chunk(a, "s36")
    for p in range(7): issue(p)
    a("v_lshlrev_b32 v8, 4, v2", "s_and_b32 s21, s2, 1", "s_lshl_b32 s21, s21, 7", "v_mov_b32 v6, s21")
    a("buffer_load_dword v7, v6, s[24:27], 0 offen sc1")
    a.srd(28, 4, WS_KV, KV_BYTES)
    a(f"s_and_b32 s21, s2, {NREP - 1}", "s_lshl_b32 s21, s21, 11", f"s_add_u32 s21, s21, {WS_FKV}")
    a.srd(32, 4, "s21", 2048)
    for p in range(7):
        a(f"s_waitcnt vmcnt({7 - p})"); a.arrive(M_CW + 4 * p)
    a("s_mov_b32 s62, 0")
    a.label("L_NP")
    a("s_add_u32 s62, s62, 1", "s_waitcnt vmcnt(0)", "v_readfirstlane_b32 s61, v7",
      "s_cmp_lg_u32 s61, 0", "s_cbranch_scc1 L_NPD", "s_mov_b32 s61, 1", f"s_cmp_ge_u32 s62, {POLL_MAX}", "s_cbranch_scc1 L_NPD", "s_sleep 4",
      "buffer_load_dword v7, v6, s[24:27], 0 offen sc1", "s_branch L_NP")
    a.label("L_NPD")
    a.lset(M_NONCE, "s61")
    a.stamp(1)
    for p in (7, 8):
        a.lwait(M_D0 + 4 * (p - 7), 8, slp=1); issue(p)
    for p in (7, 8):
        a(f"s_waitcnt vmcnt({8 - p})"); a.arrive(M_CW + 4 * p)
    if E("POLLAT", 9) <= 8: a.lwait(M_CW + 4 * E("POLLAT", 9), 5, slp=1)
    else: a.lwait(M_QDONE, E("POLLQ", 1), slp=1)
    a("s_mov_b32 s62, 0", "s_mov_b64 s[22:23], -1", "s_mov_b64 s[38:39], -1")
    a.label("L_KP")
    a("s_mov_b64 exec, s[22:23]", "s_cbranch_execz L_KP1", "buffer_load_dwordx2 v[14:15], v8, s[32:35], 0 offen sc1")
    a.label("L_KP1")
    a("s_mov_b64 exec, s[38:39]", "s_cbranch_execz L_KP2", "buffer_load_dwordx2 v[16:17], v8, s[32:35], 0 offen offset:1024 sc1")
    a.label("L_KP2")
    a("s_mov_b64 exec, -1", "s_add_u32 s62, s62, 1",
      "s_waitcnt vmcnt(0)", "v_cmp_ne_u32 s[22:23], s61, v14", "v_cmp_ne_u32 s[38:39], s61, v16", "s_or_b64 vcc, s[22:23], s[38:39]", "s_cmp_eq_u64 vcc, 0",
      "s_cbranch_scc1 L_KPD", f"s_cmp_ge_u32 s62, {POLL_MAX}", "s_cbranch_scc1 L_KPD", "s_sleep 2", "s_branch L_KP")
    a.label("L_KPD")
    a.stamp(2)
    pos = [0]
    def kvdma(n):
        for _ in range(n):
            i = pos[0]
            if i % 4 == 0: a(f"s_mov_b32 m0, {i * 1024}", "s_nop 0")
            a(f"buffer_load_dwordx4 v8, s[28:31], m0 offen offset:{(i % 4) * 1024} sc1 lds")
            pos[0] += 1
    kvdma(10)
    a("v_max_u32 v15, v15, v17")
    for sh in (8, 4, 2, 1): a("s_nop 1", f"v_max_u32_dpp v15, v15, v15 row_ror:{sh} row_mask:0xf bank_mask:0xf")
    a("s_nop 0", "v_readlane_b32 s36, v15, 0", "v_readlane_b32 s37, v15, 16", "v_readlane_b32 s38, v15, 32", "v_readlane_b32 s39, v15, 48",
      "s_max_u32 s36, s36, s37", "s_max_u32 s38, s38, s39", "s_max_u32 s36, s36, s38")
    a.lset(M_KMAX, "s36")
    kvdma(12)
    a("s_waitcnt vmcnt(12)"); a.lset(M_KVPROG, 2)
    a.stamp(3)
    a("s_waitcnt vmcnt(3)"); a.lset(M_KVPROG, 4)
    a.lwait(M_QDONE, 8, slp=0)
    KW = E("KVWIN", 8)
    done = 4
    while pos[0] < 148:
        kvdma(min(4 - pos[0] % 4, 148 - pos[0]))
        w = KW if pos[0] < 148 else 0
        a(f"s_waitcnt vmcnt({w})")
        rec = 32 if w == 0 else (pos[0] - w) * 1024 // REC
        if rec >= 32 or rec - done >= 2 and (rec <= 10 or rec - done >= 4):
            a.lset(M_KVPROG, rec); done = rec
    a.stamp(4)
    a("s_movk_i32 s21, 7282")
    for i in range(9):
        a(f"v_add_u32 v10, {64*i}, v2")
        piece_decode(a, 10, 11, 14, 15, 16, "s21")
        if i % 4: a(f"v_subrev_u32 v14, {(i % 4) * 1024}, v14")
        a("v_mul_u32_u24 v16, 18, v11", "v_add_u32 v16, v16, v15", "v_mul_u32_u24 v16, 1152, v16", f"v_add_u32 v{20+i}, v16, v14")
        a("v_lshrrev_b32 v16, 1, v15", "v_lshl_add_u32 v16, v11, 3, v16", "v_mul_u32_u24 v16, 18, v16", "v_and_b32 v15, 1, v15", "v_add3_u32 v16, v16, v15, 16",
          "v_mul_u32_u24 v16, 1152, v16", f"v_add_u32 v{30+i}, v16, v14")
    def woblocks(b0, b1, tag):
        a(f"s_mov_b32 m0, {b0*9216}", f"s_mov_b32 s21, {b0*72*1152}")
        a.label(f"L_WO{tag}")
        for i in range(9):
            a(f"buffer_load_dwordx4 v{20+i}, s[40:43], s21 offen offset:{(i % 4) * 1024} lds")
            if i in (3, 7): a("s_add_u32 m0, m0, 4096", "s_nop 0")
        a("s_add_u32 m0, m0, 1024", f"s_add_u32 s21, s21, {72*1152}", "s_waitcnt vmcnt(9)", f"s_cmp_lt_u32 s21, {b1*72*1152}", f"s_cbranch_scc1 L_WO{tag}")
    a.lwait(M_PASS3, 8, slp=32)
    woblocks(2, 5, 0)
    a("v_mul_u32_u24 v10, 1152, v2", "s_mov_b32 s21, 0")
    for i in range(3):
        a(f"buffer_load_dword v12, v10, s[40:43], s21 offen", f"buffer_load_dword v13, v10, s[40:43], s21 offen offset:128", "s_add_u32 s21, s21, 73728" if i else "s_add_u32 s21, s21, 18432")
    a.lwait(M_PASS, 8, slp=32)
    a.stamp(5)
    woblocks(5, 8, 1)
    for i in range(9):
        a(f"buffer_load_dwordx4 v{30+i}, s[40:43], 0 offen offset:{(i % 4) * 1024} lds")
        if i in (3, 7): a("s_add_u32 m0, m0, 4096", "s_nop 0")
    a.lwait(M_CONV, 4, slp=8)
    woblocks(0, 2, 2)
    a("s_waitcnt vmcnt(0)"); a.lset(M_WO, 1)
    a.stamp(6)
    a.end()

def gen(a):
    import gen4a
    kernel_head(a, NAME + "_kernel")
    a("s_cmp_ge_u32 s2, 256", "s_cbranch_scc1 L_END")
    a.stamp(0)
    a("s_load_dwordx4 s[8:11], s[0:1], 48", "s_load_dwordx4 s[12:15], s[0:1], 64", "s_load_dwordx4 s[4:7], s[0:1], 96")
    a("v_lshrrev_b32 v1, 6, v0", "v_and_b32 v2, 63, v0", "s_and_b32 s3, s2, 7", "v_readfirstlane_b32 s18, v1")
    a("s_lshr_b32 s19, s2, 3", "s_and_b32 s17, s19, 7", "s_lshr_b32 s20, s19, 3", "s_lshl_b32 s16, s3, 2", "s_add_u32 s16, s16, s20")
    a("v_and_b32 v1, 31, v2", "v_lshrrev_b32 v3, 5, v2", f"v_mov_b32 v{VM}, {MISC}", f"v_mov_b32 v{VONE}, 1")
    if E("CODEPF", 1):
        a("s_cmp_lg_u32 s18, 8", "s_cbranch_scc1 L_NOPF", "s_getpc_b64 s[36:37]")
        a.label("L_PC")
        a("v_lshl_add_u32 v10, v1, 3, s17", "v_lshlrev_b32 v10, 7, v10", f"v_min_u32 v10, L_CODE_END - L_PC - 4, v10",
          "v_mov_b32 v11, s37", "v_add_co_u32 v10, vcc, s36, v10", "s_mov_b32 exec_hi, 0", "s_nop 0",
          "v_addc_co_u32 v11, vcc, 0, v11, vcc", "global_load_dword v120, v[10:11], off", "s_mov_b32 exec_hi, -1")
        a.label("L_NOPF")
    a("s_cmp_ge_u32 s18, 8", "s_cbranch_scc1 L_ATT", "s_setprio 3", "s_cmp_ge_u32 s18, 4", "s_cbranch_scc1 L_LW", "s_cmp_eq_u32 s18, 3", "s_cbranch_scc1 L_LOADER")
    gen_h(a); gen_l(a); gen_loader(a); gen4a.gen_a(a)
    a.label("L_END")
    a("s_endpgm")
    a.label("L_CODE_END")

def build():
    hdr = open("cdna_kernels/" + NAME + ".s.ref").read().split("; Override launch")[0]
    a = F()
    L = [hdr.rstrip(), f"; @launch grid=(256,1,1) block=(1024,1,1) lds={LDS_BYTES}", '.amdgcn_target "amdgcn-amd-amdhsa--gfx950"', ".text"]
    gen(a)
    L += [("  " + l if not l.endswith(":") and not l.startswith(".") else l) for l in a.L]
    L.append('.section .rodata,"a"')
    L += kd(NAME + "_kernel", NVGPR, 100)
    return "\n".join(L) + "\n"

if __name__ == "__main__":
    out = sys.argv[1] if len(sys.argv) > 1 else "cdna_kernels/" + NAME + ".s"
    open(out, "w").write(build())
    print("wrote", out)
```

```python
from gen4 import *

def gen_a(a):
    O, V, Km, Kt, Qm, Qt = R["O"], R["V"], R["Km"], R["Kt"], R["Qm"], R["Qt"]
    a.label("L_ATT")
    a("s_sub_u32 s18, s18, 8", "s_and_b32 s21, s18, 1")
    rot(a, "s39", "s38")
    x_frag_addr(a, 44, "s21", 43)
    a("s_lshl_b32 s38, s39, 13")
    for i in range(4): a(f"v_add_u32 v{44+i}, s38, v{44+i}")
    tr_lane(a, 48, 144, 49, 50, True)
    a("v_lshlrev_b32 v50, 4, v50", "v_lshl_add_u32 v50, v49, 3, v50", "v_cmp_eq_u32 vcc, 3, v49", "s_lshr_b32 s40, s18, 1", "s_mul_i32 s38, s40, 36",
      "v_cndmask_b32 v50, v50, 32, vcc", "s_and_b32 s41, s40, 1", "s_lshl_b32 s42, s41, 2", "s_sub_u32 s38, s38, s42", f"s_add_u32 s38, s38, {W_B}",
      "v_add3_u32 v48, v48, v50, s38")
    a("s_waitcnt lgkmcnt(0)", "s_mov_b32 s4, s6", "s_mov_b32 s5, s7", "s_barrier")
    FR = 24
    QF, QD = 56, E("QD", 5)
    def q_reads(i):
        p, ksl = i // 4, i % 4
        if ksl == 0:
            a.lwait(M_CW + 4 * p, 8 if p == 0 else 5, slp=1)
            if p == 0: a.stamp(1)
            if QST and p in (3, 6, 8): a.stamp(4 + (3, 6, 8).index(p))
            if p in (1, 2): a.arrive(M_D0 + 4 * (p - 1))
        b = QF + 8 * (i % QD)
        o = (p % 7) * 9216 + ksl * 2304
        a(f"ds_read_b128 {vr(b,4)}, v{44+ksl}", f"ds_read_b64_tr_b16 {vr(b+4,2)}, v48 offset:{o}", f"ds_read_b64_tr_b16 {vr(b+6,2)}, v48 offset:{o+144}")
        if ksl == 3 and p < 8:
            next_chunk(a, "s39", [("s38", 8192)])
            for t in range(4): a(f"v_add_u32 v{44+t}, s38, v{44+t}")
    for i in range(QD - 1): q_reads(i)
    for i in range(36):
        if i + QD - 1 < 36: q_reads(i + QD - 1)
        a(f"s_waitcnt lgkmcnt({3 * min(QD - 1, 35 - i)})")
        b = QF + 8 * (i % QD)
        a(mfma(8, b + 4, b, "0" if i == 0 else None))
    a.arrive(M_QDONE)
    a("s_waitcnt vmcnt(0)")
    a.stamp(2)
    a("v_lshlrev_b32 v4, 4, v2", "v_lshlrev_b32 v5, 2, v2", "v_lshlrev_b32 v6, 4, v1", "v_mul_u32_u24 v123, 304, v3", "v_add_u32 v6, v6, v123",
      "v_mov_b32 v123, 0x40000", "v_cmp_lt_u32 vcc, 18, v1", "v_mov_b32 v7, 0xdddddddd", f"v_mov_b32 v{Kt+1}, 0x3f80", "v_cndmask_b32 v6, v6, v123, vcc")
    for i in range(16): a(f"v_mov_b32 v{O+i}, 0")
    a(f"s_mov_b32 s38, {f32bits(QSCALE)}")
    for i in range(16): a(f"v_mul_f32 v{8+i}, s38, v{8+i}")
    a("s_cmp_eq_u32 s41, 1", "s_cbranch_scc1 L_QODD")
    for i in range(4): a(f"v_cvt_pk_bf16_f32 v{Qm+i}, v{8+2*i}, v{9+2*i}")
    a(f"v_cvt_pk_bf16_f32 v{Qt}, v20, v21", "s_branch L_QDONE")
    a.label("L_QODD")
    for i in range(4): a(f"v_cvt_pk_bf16_f32 v{Qm+i}, v{10+2*i}, v{11+2*i}")
    a(f"v_cvt_pk_bf16_f32 v{Qt}, v22, v23")
    a.label("L_QDONE")
    a("v_cmp_eq_u32 vcc, 0, v3", "v_mov_b32 v123, 0", "s_nop 0", f"v_cndmask_b32 v124, 0, v{Qt}, vcc")
    for r in [Qm, Qm + 1, Qm + 2, Qm + 3, 124]: a(f"v_dot2_f32_bf16 v123, v{r}, v{r}, v123")
    a("s_nop 2", "v_mov_b32 v124, v123", "s_nop 1", "v_permlane32_swap_b32 v123, v124", "s_nop 1", "v_add_f32 v123, v123, v124")
    a.lwait(M_KVPROG, 2, "s43", slp=1)
    a.stamp(3)
    a(f"ds_read_b32 v122, v{VM} offset:{M_KMAX}")
    a(f"ds_read_b32 v{Kt}, v5 offset:2048", f"ds_read_b128 {vr(Km,4)}, v4", f"ds_read_b128 {vr(Km+4,4)}, v4 offset:1024")
    for f in range(4): a(f"ds_read_b128 {vr(V+4*f,4)}, v6 offset:{2304 + 608*f}")
    a("s_waitcnt lgkmcnt(4)")
    a(mfma(SX, Km, Qm, "0"), mfma(SX + 16, Km + 4, Qm, "0"))
    a(f"ds_read_b128 {vr(Km,4)}, v4 offset:{REC}", f"ds_read_b128 {vr(Km+4,4)}, v4 offset:{REC + 1024}")
    a("v_mul_f32 v123, v122, v123", "v_sqrt_f32 v123, v123", f"s_mov_b32 s38, {f32bits(32.0)}", f"v_mul_f32 v123, {f32bits(1.01)}, v123",
      "v_cmp_nge_f32 vcc, s38, v123", f"v_cvt_pk_bf16_f32 v{Qt+1}, -v123, 0", "s_cmp_lg_u64 vcc, 0", "s_cbranch_scc1 L_SLOW")
    a(f"v_mfma_f32_32x32x4_2b_bf16 {vr(SX,32)}, {vr(Kt,2)}, {vr(Qt,2)}, {vr(SX,32)}")
    a(f"ds_read_b32 v{Kt}, v5 offset:{REC + 2048}", "s_setprio 2")
    def kvcheck(need):
        l = a.uid("KC")
        a(f"s_cmp_ge_u32 s43, {need}", f"s_cbranch_scc1 {l}")
        a.lwait(M_KVPROG, need, "s43", slp=1)
        a.label(l)
    kvcheck(4)
    a.nop(16)
    a("s_waitcnt lgkmcnt(0)")
    for r in range(4):
        if r == 2: kvcheck(6)
        a(attn_iter(R, SX if r % 2 == 0 else SY, SY if r % 2 == 0 else SX, r * REC, pv11_prev=(r > 0)))
    a("s_mov_b32 s44, 1", "s_mov_b32 s45, 10")
    a(".p2align 6")
    a.label("L_LOOP")
    a(f"v_add_u32 v4, {4*REC}, v4", f"v_add_u32 v5, {4*REC}, v5", f"v_add_u32 v6, {4*REC}, v6")
    kvcheck("s45")
    a("s_add_u32 s45, s45, 4", "s_min_u32 s45, s45, 32")
    a("s_cmp_lg_u32 s44, 2", "s_cbranch_scc1 L_P2")
    a.arrive(M_PASS2)
    a.label("L_P2")
    a("s_cmp_lg_u32 s44, 3", "s_cbranch_scc1 L_P3")
    a.arrive(M_PASS3)
    a.label("L_P3")
    a("s_cmp_lt_u32 s44, 5", "s_cbranch_scc1 L_P0", "s_setprio 1", "s_cmp_lg_u32 s44, 5", "s_cbranch_scc1 L_P1")
    a.arrive(M_PASS)
    a.label("L_P1")
    a("s_cmp_lt_u32 s44, 7", "s_cbranch_scc1 L_P0", "s_setprio 0")
    a.label("L_P0")
    for r in range(4):
        a(attn_iter(R, SX if r % 2 == 0 else SY, SY if r % 2 == 0 else SX, r * REC))
    a("s_add_u32 s44, s44, 1", "s_cmp_lt_u32 s44, 8", "s_cbranch_scc1 L_LOOP")
    a("s_waitcnt lgkmcnt(0)")
    a(f"v_smfmac_f32_32x32x32_bf16 {vr(O,16)}, {vr(V+12,4)}, {vr(SY+24,8)}, v7")
    a.label("L_FIN")
    a("s_setprio 3")
    a.arrive(M_ADONE)
    if not QST: a.stamp(4)
    a("s_load_dwordx2 s[10:11], s[0:1], 88")
    a("s_mul_i32 s22, s16, 73728", f"s_add_u32 s22, s22, {WS_O}")
    a.srd(24, 4, "s22", 73728)
    a("s_lshl_b32 s22, s16, 10", f"s_add_u32 s22, s22, {WS_FO}")
    a.srd(28, 4, "s22", 1024)
    a("s_mul_i32 s22, s21, 36864", "s_lshl_b32 s23, s17, 2", "s_add_u32 s23, s23, s40", "s_lshl_b32 s23, s23, 10", "s_add_u32 s36, s22, s23",
      "s_lshl_b32 s23, s17, 9", "s_add_u32 s37, s22, s23", "s_lshl_b32 s23, s40, 2", "s_add_u32 s37, s37, s23", "s_add_u32 s37, s37, 32768")
    a("v_lshlrev_b32 v4, 4, v2")
    a(f"v_mov_b32 v8, v{O+10}", f"v_mov_b32 v9, v{O+10}", "s_nop 1", "v_permlane32_swap_b32 v8, v9", "s_nop 1", "v_rcp_f32 v8, v8", "s_nop 0")
    for i in range(10): a(f"v_mul_f32 v{O+i}, v8, v{O+i}")
    for i in range(5): a(f"v_cvt_pk_bf16_f32 v{12+i}, v{O+2*i}, v{O+2*i+1}")
    a("buffer_store_dwordx4 v[12:15], v4, s[24:27], s36 offen sc1", "s_mov_b32 exec_hi, 0", "buffer_store_dword v16, v4, s[24:27], s37 offen sc1", "s_mov_b32 exec_hi, -1")
    a.nonce()
    tr_lane(a, 48, 144, 49, 50, True)
    a("s_lshr_b32 s38, s18, 1", "s_cmp_ge_u32 s18, 4", "s_cselect_b32 s39, 0, 8", "s_cselect_b32 s41, 8, 32", "s_cselect_b32 s42, 2, s38",
      "s_and_b32 s46, s38, 1", "s_cmp_ge_u32 s18, 4", "s_cselect_b32 s46, s46, 0",
      "v_mul_u32_u24 v49, s39, v49", "v_mul_u32_u24 v50, s41, v50", "v_add_u32 v49, v49, v50", "s_lshl_b32 s38, s42, 6", "v_add_u32 v49, s38, v49",
      "s_mul_i32 s38, s46, 2304", "v_add3_u32 v48, v48, v49, s38", "v_add_u32 v51, 41472, v48")
    a("s_mul_i32 s38, s21, 36864", "s_lshl_b32 s39, s46, 10", "s_add_u32 s38, s38, s39", f"s_add_u32 s38, s38, {O_B}", "v_add_u32 v54, s38, v4")
    a("s_lshl_b32 s38, s17, 7", "s_lshl_b32 s39, s18, 4", "s_add_u32 s38, s38, s39")
    a.flag("s38", 28)
    if not QST: a.stamp(5)
    a.lwait(M_ADONE, 8, slp=1)
    a("s_lshl_b32 s38, s18, 7")
    a.gpoll(4, 28, 1, nl=8, soff="s38")
    for rt in range(2):
        a(f"s_lshl_b32 s38, s18, 12", f"s_add_u32 s38, s38, {rt*36864}", f"s_add_u32 m0, s38, {O_B}", "s_nop 0")
        for i in range(4): a(f"buffer_load_dwordx4 v4, s[24:27], s38 offen offset:{1024*i} sc1 lds")
        a(f"s_lshl_b32 s38, s18, 9", f"s_add_u32 s38, s38, {rt*36864+32768}", f"s_add_u32 m0, s38, {O_B}", "s_mov_b32 exec_hi, 0",
          "buffer_load_dwordx4 v4, s[24:27], s38 offen sc1 lds", "s_mov_b32 exec_hi, -1")
    a.lwait(M_WO, 1, slp=1)
    a("s_waitcnt vmcnt(0)")
    a.arrive(M_OPROG)
    a("s_lshl_b32 s38, s16, 1", "s_add_u32 s38, s38, s21", f"s_mul_i32 s38, s38, {32*2304}", "s_mul_i32 s39, s17, 144", "s_add_u32 s38, s38, s39",
      "s_lshl_b32 s39, s42, 6", "s_add_u32 s38, s38, s39", "s_add_u32 s38, s38, 1152")
    a.srd(32, 10, "s38", 31 * 2304 + 64)
    a("v_mul_u32_u24 v55, 2304, v1", "v_mul_u32_u24 v56, s41, v3", "v_add_u32 v55, v55, v56")
    a.lwait(M_OPROG, 8, slp=1)
    if not QST: a.stamp(6)
    def o_reads(ks, s):
        b = 60 + 8 * s
        ar, o, st = (48 if ks < 18 else 51), (ks % 18) * 2304, 144
        return [f"ds_read_b128 {vr(b,4)}, v54 offset:{ks*1024}", f"ds_read_b64_tr_b16 {vr(b+4,2)}, v{ar} offset:{o}", f"ds_read_b64_tr_b16 {vr(b+6,2)}, v{ar} offset:{o+st}"]
    def o_gemm(seq):
        D = 5
        for i in range(D - 1): a(o_reads(seq[i], i))
        for i, ks in enumerate(seq):
            if i + D - 1 < len(seq): a(o_reads(seq[i + D - 1], (i + D - 1) % D))
            a(f"s_waitcnt lgkmcnt({3 * min(D - 1, len(seq) - 1 - i)})")
            b = 60 + 8 * (i % D)
            a(mfma(8, b + 4, b, "0" if i == 0 else None))
    a("s_cmp_ge_u32 s18, 4", "s_cbranch_scc1 L_NARROW")
    o_gemm(list(range(36)))
    a.nop(12)
    for i in range(8): a(f"v_cvt_pk_bf16_f32 v{FR+i}, v{8+2*i}, v{9+2*i}")
    a(f"buffer_store_dwordx4 {vr(FR,4)}, v55, s[32:35], 0 offen", f"buffer_store_dwordx4 {vr(FR+4,4)}, v55, s[32:35], 0 offen offset:16")
    a.end()
    a.label("L_NARROW")
    o_gemm(list(range(0, 36, 2)))
    a("s_lshl_b32 s38, s21, 10", f"s_add_u32 s38, s38, {MISC + M_REDBUF}", "v_add_u32 v56, s38, v4", "s_lshl_b32 s39, s21, 2", f"v_add_u32 v{VM}, s39, v{VM}")
    a.nop(8)
    a("s_cmp_eq_u32 s46, 0", "s_cbranch_scc1 L_NARROW0")
    a("ds_write_b128 v56, v[8:11]", "s_waitcnt lgkmcnt(0)")
    a.arrive(M_RED)
    a.end()
    a.label("L_NARROW0")
    a.lwait(M_RED, 1, slp=1)
    a("ds_read_b128 v[12:15], v56", "s_waitcnt lgkmcnt(0)")
    for i in range(4): a(f"v_add_f32 v{8+i}, v{8+i}, v{12+i}")
    a("v_cvt_pk_bf16_f32 v12, v8, v9", "v_cvt_pk_bf16_f32 v13, v10, v11", "buffer_store_dwordx2 v[12:13], v55, s[32:35], 0 offen")
    a.end()
    a.label("L_SLOW")
    a.lwait(M_KVPROG, 32, "s43")
    a(f"v_mov_b32 v{Qt+1}, 0", "v_mov_b32 v123, 0xff800000", "v_mov_b32 v120, v4", "v_mov_b32 v121, v5")
    a.nop(12)
    def qk_slow():
        a(f"ds_read_b32 v{Kt}, v121 offset:2048", f"ds_read_b128 {vr(Km,4)}, v120", f"ds_read_b128 {vr(Km+4,4)}, v120 offset:1024")
        a("s_waitcnt lgkmcnt(0)")
        a(mfma(SX, Km, Qm, "0"), mfma(SX + 16, Km + 4, Qm, "0"))
        a.nop(10)
        a(f"v_mfma_f32_32x32x4_2b_bf16 {vr(SX,32)}, {vr(Kt,2)}, {vr(Qt,2)}, {vr(SX,32)}")
        a(f"v_add_u32 v120, {REC}, v120", f"v_add_u32 v121, {REC}, v121")
        a.nop(20)
    a("s_mov_b32 s44, 0")
    a.label("L_SLOW1")
    qk_slow()
    for i in range(16): a(f"v_max3_f32 v123, v123, v{SX+2*i}, v{SX+2*i+1}")
    a("s_add_u32 s44, s44, 1", "s_cmp_lt_u32 s44, 32", "s_cbranch_scc1 L_SLOW1")
    a("v_mov_b32 v124, v123", "s_nop 1", "v_permlane32_swap_b32 v123, v124", "s_nop 1", "v_max_f32 v123, v123, v124")
    a("v_mov_b32 v120, v4", "v_mov_b32 v121, v5", "s_mov_b32 s44, 0")
    a.label("L_SLOW2")
    for f in range(4): a(f"ds_read_b128 {vr(V+4*f,4)}, v6 offset:{2304 + 608*f}")
    qk_slow()
    a(f"v_add_u32 v6, {REC}, v6")
    for i in range(32): a(f"v_sub_f32 v{SX+i}, v{SX+i}, v123")
    for i in range(32): a(f"v_exp_f32 v{SX+i}, v{SX+i}")
    a("s_nop 1")
    for f in range(4): a(f"v_smfmac_f32_32x32x32_bf16 {vr(O,16)}, {vr(V+4*f,4)}, {vr(SX+8*f,8)}, v7")
    a("s_nop 7")
    a("s_add_u32 s44, s44, 1", "s_cmp_lt_u32 s44, 32", "s_cbranch_scc1 L_SLOW2")
    a.arrive(M_PASS2); a.arrive(M_PASS3); a.arrive(M_PASS)
    a("s_branch L_FIN")
```

```python
import sys, os
from gen import A, kd, kernel_head, mfma, swap23, f32bits, QSCALE, NAME, STAMP, vr
from attn_core import attn_iter, REC

KV_BYTES = 32 * REC
WS_KV  = 0x000000
WS_FKV = 0x030000
WS_FO  = 0x040000
WS_FP  = 0x060000
WS_XC  = 0x048000
WS_FY  = 0x04C000
WS_RDY = 0x052000
WS_O   = 0x0A0000
WS_Y   = 0x640000
WS_XI  = 0x300000
X_B = 23040; W_B = X_B + 73728; MISC = W_B + 64512; LDS_BYTES = 163840
SCR_B = 151552; O_B = 87552
M_CW = 0; M_D0 = 36; M_KVRED = 44; M_QDONE = 48; M_NONCE = 52; M_KVPROG = 56; M_KMAX = 60; M_PREP = 64; M_PASS3 = 68; M_PASS = 72
M_WO = 76; M_ADONE = 80; M_OPROG = 84; M_RED = 88; M_CONV = 96; M_SJ = 100; M_SR = 104; M_PASS2 = 108; M_PZ = 112; M_OC = 128; M_REDBUF = 512
VM, VONE, VT = 125, 126, 127
NVGPR = 128
R = dict(O=72, idx=7, V=88, Km=104, Kt=112, Qm=116, Qt=114, aK=4, aT=5, aV=6)
SX, SY = 8, 40
POLL_MAX = 1 << 15
E = lambda k, d: int(os.environ.get(k, d))
NREP = E("NREP", 8)
OPOL = os.environ.get("OPOL", "")
ROT, QST, CONVD, LWIN, NOCONV = E("ROT", 1), E("QST", 0), E("CONVD", 2), E("LWIN", 3), E("NOCONV", 0)

class F(A):
    n = 0
    def uid(s, p):
        s.n += 1; return f"{p}_{s.n}"
    def arrive(s, off):
        s("s_mov_b64 exec, 1", f"ds_add_u32 v{VM}, v{VONE} offset:{off}", "s_mov_b64 exec, -1")
    def lwait(s, off, target, sreg="s60", slp=1):
        l = s.uid("LW")
        s.label(l)
        s(f"ds_read_b32 v{VT}, v{VM} offset:{off}", "s_waitcnt lgkmcnt(0)", f"v_readfirstlane_b32 {sreg}, v{VT}", f"s_cmp_ge_u32 {sreg}, {target}")
        if slp: s(f"s_cbranch_scc1 {l}_d", f"s_sleep {slp}", f"s_branch {l}"); s.label(l + "_d")
        else: s(f"s_cbranch_scc0 {l}")
    def lset(s, off, val):
        s(f"v_mov_b32 v{VT}, {val}", "s_mov_b64 exec, 1", f"ds_write_b32 v{VM}, v{VT} offset:{off}", "s_mov_b64 exec, -1")
    def nonce(s, slp=1): s.lwait(M_NONCE, 1, "s61", slp)
    def gpoll(s, voff, srd, slp, nl=64, soff="0", off=0):
        l = s.uid("GP")
        if nl < 64: s(f"s_mov_b32 exec_lo, {(1 << nl) - 1}", "s_mov_b32 exec_hi, 0")
        s("s_mov_b32 s62, 0")
        s.label(l)
        s(f"buffer_load_dword v{VT}, v{voff}, s[{srd}:{srd+3}], {soff} offen offset:{off} sc1", "s_add_u32 s62, s62, 1", "s_waitcnt vmcnt(0)",
          f"v_cmp_ne_u32 vcc, s61, v{VT}", "s_cmp_eq_u64 vcc, 0", f"s_cbranch_scc1 {l}_d", "s_mov_b64 exec, vcc",
          f"s_cmp_ge_u32 s62, {POLL_MAX}", f"s_cbranch_scc1 {l}_d", f"s_sleep {slp}", f"s_branch {l}")
        s.label(l + "_d")
        s("s_mov_b64 exec, -1")
    def broadcast(s, word_sreg, t):
        s("s_mul_i32 s58, s22, 58255", "s_lshr_b32 s58, s58, 16", f"v_lshlrev_b32 v{t}, 3, v1", f"v_add3_u32 v{t}, v{t}, v3, s58", f"v_lshlrev_b32 v{t}, 7, v{t}",
          f"v_mov_b32 v{VT}, s61", "s_cmp_eq_u32 s58, 7", "s_cselect_b32 exec_hi, 0, -1",
          f"buffer_store_dword v{VT}, v{t}, s[52:55], {word_sreg} offen sc1", "s_mov_b32 exec_hi, -1")
    def flag(s, off_sreg, srd, n=1):
        s(f"v_mov_b32 v{VT}, s61", f"v_lshlrev_b32 v{VT-3}, 4, v2", f"s_mov_b64 exec, {n}" if isinstance(n, str) else f"s_mov_b64 exec, {(1 << n) - 1}", "s_waitcnt vmcnt(0)",
          f"buffer_store_dword v{VT}, v{VT-3}, s[{srd}:{srd+3}], {off_sreg} offen sc1", "s_mov_b64 exec, -1")
    def end(s, role="x"):
        if STAMP == 3:
            k, r = os.environ["DIAG"][1:], os.environ["DIAG"][0]
            if r == role:
                l = s.uid("DG")
                s("s_mov_b64 exec, -1", "s_waitcnt vmcnt(0) lgkmcnt(0)"); s.stamp(7)
                s(f"v_mov_b32 v{VM}, {MISC}"); s.nonce()
                if k == "n": s("s_movk_i32 s56, 6000")
                elif k == "m": s("s_sub_u32 s56, s61, s66", "s_max_i32 s56, s56, 0", "s_min_u32 s56, s56, 6000", "s_lshl_b32 s56, s56, 2", "s_add_u32 s56, s56, 6000")
                else: s(f"s_sub_u32 s56, s{66 + 4 * int(k)}, s61", "s_max_i32 s56, s56, 0", "s_min_u32 s56, s56, 6000", "s_lshl_b32 s56, s56, 2", "s_add_u32 s56, s56, 6000")
                s.label(l)
                s("s_sleep 2", "s_memrealtime s[58:59]", "s_waitcnt lgkmcnt(0)", "s_sub_u32 s58, s58, s61", "s_cmp_lt_u32 s58, s56", f"s_cbranch_scc1 {l}")
            s("s_endpgm"); return
        s.stamp_out(0, 7, 8); s("s_endpgm")

def tr_lane(a, dst, stride, t0, t1, tp=False):
    if tp: a(f"v_and_b32 v{t0}, 12, v2", f"v_lshl_add_u32 v{t0}, v3, 1, v{t0}")
    else: a(f"v_bfe_u32 v{t0}, v2, 2, 2", f"v_lshl_add_u32 v{t0}, v3, 3, v{t0}")
    a(f"v_mul_u32_u24 v{dst}, {stride}, v{t0}",
      f"v_bfe_u32 v{t0}, v2, 4, 1", f"v_bfe_u32 v{t1}, v2, 1, 1", f"v_lshl_add_u32 v{t0}, v{t0}, 1, v{t1}", f"v_and_b32 v{t1}, 1, v2")

def x_dma_voff(a, d, t0, t1):
    a(f"v_lshrrev_b32 v{t0}, 3, v2", f"v_mul_u32_u24 v{d}, 1152, v{t0}", f"v_and_b32 v{t0}, 7, v2", f"v_lshrrev_b32 v{t1}, 4, v2", f"v_xor_b32 v{t0}, v{t0}, v{t1}",
      f"v_lshl_add_u32 v{d}, v{t0}, 4, v{d}")

def x_frag_addr(a, d, rowtile_sreg, t0):
    a(f"v_bfe_u32 v{t0}, v1, 1, 3", f"v_xor_b32 v{t0}, v{t0}, v3", f"v_lshlrev_b32 v{d}, 4, v{t0}", f"v_lshl_add_u32 v{d}, v1, 7, v{d}",
      f"s_lshl_b32 s60, {rowtile_sreg}, 12", f"s_add_u32 s60, s60, {X_B}", f"v_add_u32 v{d}, s60, v{d}")
    for i in (1, 2, 3): a(f"v_xor_b32 v{d+i}, {32*i}, v{d}")

def piece_decode(a, e, pos, c16, kk, t, magic):
    a(f"v_mul_u32_u24 v{pos}, {magic}, v{e}", f"v_lshrrev_b32 v{pos}, 16, v{pos}", f"v_mul_u32_u24 v{c16}, 9, v{pos}", f"v_sub_u32 v{c16}, v{e}, v{c16}",
      f"v_lshlrev_b32 v{c16}, 4, v{c16}", f"v_and_b32 v{kk}, 3, v{pos}", f"v_bfe_u32 v{t}, v{pos}, 2, 2", f"v_lshl_add_u32 v{kk}, v{kk}, 2, v{t}", f"v_lshrrev_b32 v{pos}, 4, v{pos}")

def next_chunk(a, c, delta_pairs=()):
    a(f"s_add_u32 {c}, {c}, 1", f"s_cmp_eq_u32 {c}, 9", f"s_cselect_b32 {c}, 0, {c}")
    for sreg, step in delta_pairs: a(f"s_movk_i32 {sreg}, {step}", f"s_cselect_b32 {sreg}, {(-8*step) & 0xffffffff}, {sreg}")

def rot(a, d, t):
    if ROT: a(f"s_lshl_b32 {d}, s20, 1", f"s_add_u32 {d}, {d}, s17", f"s_sub_u32 {t}, {d}, 9", f"s_cmp_ge_u32 {d}, 9", f"s_cselect_b32 {d}, {t}, {d}")
    else: a(f"s_mov_b32 {d}, 0")

def stream_positions(a, issue, per):
    for p in range(9 + LWIN):
        if p == E("BARAT", 1): a("s_barrier")
        if p < 9:
            if p >= 7: a.lwait(M_D0 + 4 * (p - 7), 8, slp=1)
            issue(p)
        q = p - LWIN
        if q >= 0:
            a(f"s_waitcnt vmcnt({per * (min(p, 8) - q)})"); a.arrive(M_CW + 4 * q)

def gen_h(a):
    a("s_cmp_ge_u32 s17, 4", "s_cbranch_scc1 L_NOWKV")
    x_dma_voff(a, 40, 41, 42)
    a("v_xor_b32 v41, 64, v40")
    a("s_and_b32 s21, s17, 1", "s_lshl_b32 s22, s16, 1", "s_add_u32 s22, s22, s21", "s_mul_i32 s22, s22, 36864", "s_mul_i32 s23, s18, 384", "s_add_u32 s36, s22, s23",
      "s_mul_i32 s37, s18, 24576", "s_lshl_b32 s23, s21, 12", "s_add_u32 s37, s37, s23", f"s_add_u32 s37, s37, {X_B}")
    a("s_movk_i32 s22, 6554")
    for i in range(5):
        a(f"v_add_u32 v6, {64*i}, v2", "v_mul_u32_u24 v7, s22, v6", "v_lshrrev_b32 v7, 16, v7", "v_sub_u32 v7, v2, v7", f"v_lshl_add_u32 v{8+i}, v7, 2, 64", f"v_add_u32 v{8+i}, 192, v{8+i}")
    a("s_mul_i32 s22, s18, 6912", "s_sub_u32 s22, s22, 256", "s_ashr_i32 s39, s22, 31", "s_mul_i32 s23, s18, 7680", "s_mul_i32 s38, s18, 24576")
    x_frag_addr(a, 44, "s21", 43)
    for i in range(4): a(f"v_add_u32 v{44+i}, s38, v{44+i}")
    a("s_waitcnt lgkmcnt(0)")
    a("s_cmp_ge_u32 s17, 2", "s_cselect_b32 s24, s14, s12", "s_cselect_b32 s25, s15, s13", "s_add_u32 s24, s24, s22", "s_addc_u32 s25, s25, s39",
      f"s_mov_b32 s26, {6912+256}", "s_mov_b32 s27, 0x20000")
    a.srd(28, 8, "s36", 31 * 1152 + 384)
    for c in range(3):
        for q in range(4):
            a(f"s_add_u32 m0, s37, {c*8192 + q*1024}", f"s_mov_b32 s38, {q*9216 + c*128}", f"buffer_load_dwordx4 v{40 + (q & 1)}, s[28:31], s38 offen lds")
        for g in range(2 * c, 2 * c + 2):
            a(f"s_add_u32 m0, s23, {g*1280}", f"s_movk_i32 s38, {g*1152}")
            for i in range(5): a(f"buffer_load_dword v{8+i}, s[24:27], s38 offen offset:{256*i} lds")
    a("s_barrier")
    a("s_mov_b32 s4, s6", "s_mov_b32 s5, s7")
    tr_lane(a, 48, 40, 49, 50)
    a("v_lshlrev_b32 v50, 4, v50", "v_lshl_add_u32 v50, v49, 3, v50", "v_cmp_lt_u32 vcc, 1, v49", "v_lshlrev_b32 v53, 4, v2", "v_add_u32 v57, s23, v53",
      "v_cndmask_b32 v50, v50, 32, vcc", "v_add3_u32 v48, v48, v50, s23")
    a(f"s_mul_i32 s22, s16, {REC}")
    a.srd(24, 4, "s22", REC)
    a.srd(28, 4, WS_FKV, 65536)
    swap23(a, 52, 1, 54)
    a.stamp(1); a.stamp(2)
    FR, QF, QD = 24, 64, 5
    def reads(i):
        b = QF + 8 * (i % QD)
        if i % 4 == 0: a(f"s_waitcnt vmcnt({14 * (2 - i // 4)})")
        if i == 8: a.arrive(M_CW); a.stamp(3)
        a(f"ds_read_b128 {vr(b,4)}, v{44 + i % 4} offset:{(i // 4) * 8192}", f"ds_read_b64_tr_b16 {vr(b+4,2)}, v48 offset:{i*640}",
          f"ds_read_b64_tr_b16 {vr(b+6,2)}, v48 offset:{i*640+160}")
    def proj(isv):
        for i in range(12):
            if i + QD - 1 < 12: reads(i + QD - 1)
            a(f"s_waitcnt lgkmcnt({3 * min(QD - 1, 11 - i)})")
            b = QF + 8 * (i % QD)
            c = "0" if i == 0 else None
            a(mfma(8, b, b + 4, c) if isv else mfma(8, b + 4, b, c))
    for i in range(QD - 1): reads(i)
    a("s_cmp_ge_u32 s17, 2", "s_cbranch_scc1 L_VP")
    proj(False)
    a("s_branch L_KVRED")
    a.label("L_VP")
    proj(True)
    a.label("L_KVRED")
    a("s_cmp_eq_u32 s18, 0", "s_cbranch_scc1 L_KVH0")
    a.nop(10)
    for i in range(4): a(f"ds_write_b128 v57, {vr(8+4*i,4)} offset:{1024*i}")
    a.arrive(M_KVRED)
    a("s_branch L_EPI")
    a.label("L_KVH0")
    a.stamp(4)
    a.nop(4)
    a.lwait(M_KVRED, 2, slp=0)
    for w in range(2):
        for i in range(4): a(f"ds_read_b128 {vr(64+16*w+4*i,4)}, v53 offset:{7680*(w+1) + 1024*i}")
    for w in range(2):
        a(f"s_waitcnt lgkmcnt({4 - 4*w})")
        for i in range(8): a(f"v_pk_add_f32 {vr(8+2*i,2)}, {vr(8+2*i,2)}, {vr(64+16*w+2*i,2)}")
    a.stamp(5)
    a("s_cmp_ge_u32 s17, 2", "s_cbranch_scc1 L_VPROJ")
    a("s_lshl_b32 s23, s21, 10", "v_lshlrev_b32 v54, 4, v52", "v_lshl_add_u32 v54, v3, 9, v54",
      "s_lshl_b32 s22, s21, 7", "s_add_u32 s22, s22, 2048", "v_lshlrev_b32 v55, 2, v52", "v_cmp_eq_u32 vcc, 0, v3", "v_mov_b32 v61, 0")
    for i in range(5): a(f"v_cvt_pk_bf16_f32 v{FR+i}, v{8+2*i}, v{9+2*i}")
    a(f"buffer_store_dwordx4 {vr(FR,4)}, v54, s[24:27], s23 offen sc1", "s_mov_b32 exec_hi, 0",
      f"buffer_store_dword v{FR+4}, v55, s[24:27], s22 offen sc1", "s_mov_b32 exec_hi, -1")
    a(f"v_cndmask_b32 v56, 0, v{FR+4}, vcc")
    for r in [FR, FR + 1, FR + 2, FR + 3, 56]: a(f"v_dot2_f32_bf16 v61, v{r}, v{r}, v61")
    a("s_nop 2", "v_mov_b32 v56, v61", "s_nop 1", "v_permlane32_swap_b32 v61, v56", "s_nop 1", "v_add_f32 v61, v61, v56")
    for sh in (8, 4, 2, 1): a("s_nop 1", f"v_max_u32_dpp v61, v61, v61 row_ror:{sh} row_mask:0xf bank_mask:0xf")
    a("s_nop 0", "v_readlane_b32 s22, v61, 0", "v_readlane_b32 s23, v61, 16", "s_max_u32 s22, s22, s23", "s_branch L_KVFLAG")
    a.label("L_VPROJ")
    a("s_mul_i32 s23, s21, 1216", "s_add_u32 s23, s23, 2304", "v_mul_u32_u24 v54, 304, v3", "v_lshl_add_u32 v54, v1, 4, v54",
      "v_cmp_eq_u32 vcc, 18, v1", "v_mov_b32 v55, 0x3f803f80", "v_cmp_gt_u32 s[40:41], 19, v1")
    for i in range(8): a(f"v_cvt_pk_bf16_f32 v{FR+i}, v{8+2*i}, v{9+2*i}")
    for i in range(8): a(f"v_cndmask_b32 v{FR+i}, v{FR+i}, v55, vcc")
    a("s_mov_b64 exec, s[40:41]", f"buffer_store_dwordx4 {vr(FR,4)}, v54, s[24:27], s23 offen sc1",
      f"buffer_store_dwordx4 {vr(FR+4,4)}, v54, s[24:27], s23 offen offset:608 sc1", "s_mov_b64 exec, -1", "s_mov_b32 s22, 0")
    a.label("L_KVFLAG")
    a.nonce()
    a("s_lshl_b32 s23, s16, 2", "s_add_u32 s23, s23, s17", "s_lshl_b32 s23, s23, 4", "v_lshlrev_b32 v56, 11, v2", "v_mov_b32 v58, s61", "v_mov_b32 v59, s22",
      f"s_mov_b32 exec_lo, {(1 << NREP) - 1}", "s_mov_b32 exec_hi, 0", "s_waitcnt vmcnt(0)", "buffer_store_dwordx2 v[58:59], v56, s[28:31], s23 offen sc1")
    a.stamp(6)
    a.end("k")
    a.label("L_NOWKV")
    a("s_waitcnt lgkmcnt(0)", "s_mov_b32 s4, s6", "s_mov_b32 s5, s7", "s_barrier")
    a.arrive(M_CW)
    if E("TLBW", 1):
        a("s_cmp_lg_u32 s18, 1", "s_cbranch_scc1 L_NOTLB")
        a("s_load_dwordx16 s[24:39], s[0:1], 0", "s_load_dwordx4 s[40:43], s[0:1], 80", "s_mov_b32 s44, 0x2f0000", "s_mov_b32 s45, 0x5f0000", "s_mov_b32 s46, 0x600000",
          "s_mov_b32 s47, 0x9f0000", f"s_mov_b32 s48, {WS_RDY + 0x8000}", "s_mov_b32 s49, 0x23ff00")
        for off in ("s48", "s44", "s45", "s46", "s47"): a(f"s_load_dword s52, s[4:5], {off}")
        a("s_waitcnt lgkmcnt(0)")
        for b in (24, 26, 28, 32): a(f"s_load_dword s52, s[{b}:{b+1}], 0", f"s_load_dword s52, s[{b}:{b+1}], s49")
        a("s_load_dword s52, s[40:41], 0",
          "s_load_dword s52, s[30:31], 0", "s_load_dword s52, s[34:35], 0", "s_waitcnt lgkmcnt(0)")
        a.label("L_NOTLB")
    a("s_cmp_lg_u32 s18, 0", "s_cbranch_scc1 L_EPI", "s_cmp_ge_u32 s17, 6", "s_cbranch_scc1 L_EPI")
    a("s_endpgm")
    a.label("L_EPI")
    if NOCONV: a.end()
    a("s_load_dwordx2 s[8:9], s[0:1], 0", "s_load_dwordx2 s[10:11], s[0:1], 88")
    a("s_sub_u32 s21, s18, 1", "s_lshl_b32 s21, s21, 5", "s_add_u32 s21, s21, s19",
      "s_lshl_b32 s22, s20, 1", "s_add_u32 s22, s22, s17", "s_add_u32 s22, s22, 58", "s_cmp_eq_u32 s18, 0", "s_cselect_b32 s21, s22, s21",
      "s_mul_i32 s22, s3, 72", "s_add_u32 s21, s21, s22", "s_lshr_b32 s22, s21, 6", "s_and_b32 s23, s21, 63")
    a.nonce(24)
    a.srd(52, 4, WS_RDY, 32768)
    a("v_lshlrev_b32 v110, 4, v2", "s_lshl_b32 s57, s22, 2")
    a.stamp(1)
    a("s_cmp_lg_u32 s23, 0", "s_cbranch_scc1 L_NOAGG1")
    a("s_lshl_b32 s37, s22, 11", f"s_add_u32 s37, s37, {WS_FP}")
    a.srd(24, 4, "s37", 2048)
    a.lwait(M_PREP, 4, slp=4)
    a.gpoll(110, 24, 2); a.gpoll(110, 24, 2, off=1024)
    a.broadcast("s57", 111)
    a.label("L_NOAGG1")
    a.stamp(2); a.stamp(3); a.stamp(4)
    a("s_lshl_b32 s37, s22, 11", f"s_add_u32 s37, s37, {WS_FY}")
    a.srd(24, 4, "s37", 2048)
    a("s_bfe_u32 s56, s23, 0x10005", "s_lshr_b32 s38, s23, 4", "s_lshl_b32 s38, s38, 9", "s_bfe_u32 s37, s23, 0x10003", "s_lshl_b32 s37, s37, 2", "s_add_u32 s38, s38, s37",
      "s_and_b32 s37, s23, 7", "s_lshl_b32 s37, s37, 5", "s_add_u32 s38, s38, s37")
    a("s_lshl_b32 s37, s22, 7", "s_mul_i32 s39, s38, 1152", "s_add_u32 s39, s39, s37", "s_mul_i32 s38, s38, 2304", "s_add_u32 s38, s38, s37")
    a("v_mul_u32_u24 v4, 9216, v3", "v_lshl_add_u32 v4, v1, 2, v4", "v_add_u32 v4, s39, v4",
      "v_mul_u32_u24 v5, 18432, v3", "v_lshl_add_u32 v5, v1, 2, v5", "v_add_u32 v5, s38, v5",
      "v_mul_u32_u24 v6, 12288, v1", "v_lshl_add_u32 v6, v3, 4, v6", "s_lshl_b32 s37, s23, 6", "v_add_u32 v6, s37, v6", "v_add_u32 v7, 6144, v6")
    a(f"s_mul_i32 s37, s22, {64*6144}", f"s_add_u32 s37, s37, {WS_Y}")
    a.srd(32, 4, "s37", 64 * 6144)
    a.srd(40, 8, 0, 2359296); a.srd(44, 10, 0, 4718592)
    a.lwait(M_PASS3, 8, slp=32)
    rows = [0, 1, 2, 3, 256, 257, 258, 259]
    for i in range(2):
        for j, r in enumerate(rows): a(f"s_mov_b32 s37, {(r + 16*i)*1152}", f"buffer_load_dword v{64+8*i+j}, v4, s[40:43], s37 offen")
    a.lwait(M_CONV, 4, slp=8)
    a.stamp(5)
    a("s_add_u32 s57, s57, 64", "s_cmp_lg_u32 s23, 0", "s_cbranch_scc1 L_NOAGG2")
    a.gpoll(110, 24, 2); a.gpoll(110, 24, 2, off=1024)
    a.broadcast("s57", 111)
    a.label("L_NOAGG2")
    a("s_lshl_b32 s37, s2, 7", "s_add_u32 s37, s37, s57")
    a.gpoll(110, 52, 4, nl=1, soff="s37")
    a.stamp(6)
    for i in range(2):
        a(f"buffer_load_dwordx4 {vr(8+8*i,4)}, v6, s[32:35], 0 offen offset:{32*i} sc1", f"buffer_load_dwordx4 {vr(12+8*i,4)}, v7, s[32:35], 0 offen offset:{32*i} sc1")
    a("s_cmp_eq_u32 s56, 1", "s_cselect_b32 s37, 0, 0x1000000")
    for i in range(2):
        a(f"buffer_load_dwordx4 {vr(80+8*i,4)}, v6, s[32:35], s37 offen offset:{2048+32*i} sc1", f"buffer_load_dwordx4 {vr(84+8*i,4)}, v7, s[32:35], s37 offen offset:{2048+32*i} sc1")
    a("s_mov_b32 s36, 0xffff0000")
    for i in range(2):
        a(f"s_waitcnt vmcnt({2 if i == 0 else 8})")
        for j, r in enumerate(rows):
            t = 32 + 8 * (j & 1); q = 64 + 8 * i + j
            for e in range(2):
                for k, base in enumerate((8, 80)):
                    src = base + 8 * i + 4 * e + (j >> 1)
                    a(f"v_lshlrev_b32 v{t+4*k+e}, 16, v{src}" if j % 2 == 0 else f"v_and_b32 v{t+4*k+e}, s36, v{src}")
            a(f"v_lshlrev_b32 v{t+2}, 16, v{q}", f"v_and_b32 v{t+3}, s36, v{q}", f"v_pk_add_f32 {vr(t,2)}, {vr(t,2)}, {vr(t+4,2)}",
              f"v_pk_mul_f32 {vr(t,2)}, {vr(t,2)}, {vr(t+2,2)}",
              f"v_cvt_pk_bf16_f32 v{q}, v{t}, v{t+1}", f"s_mov_b32 s37, {(r + 16*i)*2304}", f"buffer_store_dword v{q}, v5, s[44:47], s37 offen {OPOL}")
    a.end("e")

def gen_l(a):
    a.label("L_LW")
    a("s_sub_u32 s18, s18, 4")
    x_dma_voff(a, 40, 41, 42)
    a("v_xor_b32 v41, 64, v40", "v_add_u32 v41, 8192, v41")
    a("s_movk_i32 s21, 7282", "s_lshl_b32 s22, s18, 7")
    for e in range(2):
        a(f"v_add_u32 v10, s22, v2" if e == 0 else "v_add_u32 v10, 64, v10")
        piece_decode(a, 10, 11, 12, 13, 14, "s21")
        a("v_lshl_add_u32 v13, v11, 4, v13", "v_mul_u32_u24 v13, 1152, v13", f"v_add_u32 v{42+e}, v13, v12")
    a("v_subrev_u32 v43, 1024, v43")
    rot(a, "s36", "s37")
    a("s_mul_i32 s22, s16, 73728", "s_mul_i32 s23, s18, 18432", "s_add_u32 s22, s22, s23", "s_lshl_b32 s47, s18, 11", f"s_add_u32 s37, s47, {W_B}", f"s_add_u32 s47, s47, {X_B}")
    a("s_lshr_b32 s38, s18, 1", "s_xor_b32 s38, s38, s17", "s_and_b32 s38, s38, 5", "s_cmp_eq_u32 s38, 0", "s_cselect_b64 s[48:49], 1, -1")
    a("s_mul_i32 s23, s17, 144", f"s_sub_u32 s38, {576*1152}, s23")
    a("s_waitcnt lgkmcnt(0)")
    a.srd(24, 8, "s22", 18432)
    a.srd(28, 10, "s23", "s38")
    a("s_mov_b32 s4, s6", "s_mov_b32 s5, s7", "s_load_dwordx2 s[14:15], s[0:1], 32", "s_load_dwordx2 s[12:13], s[0:1], 40",
      "s_load_dwordx4 s[8:11], s[0:1], 8", "s_load_dwordx2 s[6:7], s[0:1], 24", "s_setprio 2")
    def issue(p):
        a("s_lshl_b32 s38, s36, 13", "s_add_u32 m0, s47, s38", "s_lshl_b32 s38, s36, 7", "s_mov_b64 exec, s[48:49]",
          "buffer_load_dwordx4 v40, s[24:27], s38 offen lds", "buffer_load_dwordx4 v41, s[24:27], s38 offen offset:1024 lds",
          f"s_add_u32 m0, s37, {(p % 7) * 9216}", "s_mul_i32 s38, s36, 73728", "s_mov_b64 exec, -1",
          "buffer_load_dwordx4 v42, s[28:31], s38 offen lds", "buffer_load_dwordx4 v43, s[28:31], s38 offen offset:1024 lds")
        if p < 8: next_chunk(a, "s36")
    stream_positions(a, issue, 4)
    a("s_setprio 3")
    a.stamp(1)
    KR, VR_, WR, W8, KU, VU, XV, CH = 28, 40, 8, 12, 20, 48, 50, 56
    a.srd(24, 8, 0, 2359296); a.srd(28, 10, 0, 2359296); a.srd(32, 6, 0, 4608); a.srd(44, 4, WS_FP, 9 * 2048)
    a("s_mul_i32 s21, s3, 36", "s_add_u32 s21, s21, s19", "s_mov_b32 s43, 4")
    a("s_lshl_b32 s36, s18, 5", f"s_sub_u32 s36, {SCR_B + 112}, s36", "v_mul_u32_u24 v64, 288, v1", "v_lshlrev_b32 v65, 4, v3", "v_sub_u32 v64, v64, v65", "v_add_u32 v64, s36, v64",
      "s_mul_i32 s36, s18, 2304", f"s_add_u32 s36, s36, {SCR_B}", "v_lshrrev_b32 v66, 3, v2", "v_mul_u32_u24 v65, 144, v66", "v_and_b32 v67, 7, v2", "v_lshl_add_u32 v65, v67, 4, v65",
      "v_add_u32 v65, s36, v65", "v_lshlrev_b32 v66, 12, v66", "v_lshl_add_u32 v66, v67, 4, v66", "s_lshl_b32 s36, s18, 16", "v_add_u32 v66, s36, v66")
    a.nonce()
    a.lwait(M_KVPROG, E("PREPKV", 2), slp=2)
    a.label("L_PREP")
    a("s_lshr_b32 s22, s21, 5", "s_and_b32 s23, s21, 31")
    a("s_lshl_b32 s36, s23, 2", "s_add_u32 s36, s36, s18", "s_lshl_b32 s38, s36, 4", f"s_mul_i32 s36, s36, {16*1152}", "s_lshl_b32 s37, s22, 7", "s_add_u32 s36, s36, s37",
      f"v_mul_u32_u24 v5, {8*1152}, v3", "v_lshl_add_u32 v5, v1, 2, v5", "v_add_u32 v5, s36, v5", f"v_subrev_u32 v6, {3*1152}, v5",
      "s_lshl_b32 s37, s22, 9", "v_lshlrev_b32 v7, 4, v1", "s_movk_i32 s36, 4608")
    a(f"buffer_load_dwordx4 {vr(WR,4)}, v7, s[32:35], s37 offen")
    for i in range(3): a(f"buffer_load_dword v{KR+i}, v6, s[24:27], 0 offen offset:{1152*i}")
    for i in range(8):
        so = "s36" if i >= 4 else "0"
        a(f"buffer_load_dword v{KR+3+i}, v5, s[24:27], {so} offen offset:{1152*(i%4)}", f"buffer_load_dword v{VR_+i}, v5, s[28:31], {so} offen offset:{1152*(i%4)}")
    a("s_cmp_lg_u32 s43, 4", "s_cbranch_scc1 L_NOPF2", "s_cmp_lt_u32 s19, 28", "s_cbranch_scc1 L_NOPF2")
    a("s_add_u32 s36, s21, 4", "s_lshr_b32 s37, s36, 5", "s_and_b32 s36, s36, 31", f"s_mul_i32 s36, s36, {64*1152}", "s_lshl_b32 s37, s37, 7", "s_add_u32 s36, s36, s37",
      "v_mul_u32_u24 v68, 1152, v2", "s_cmp_ge_u32 s18, 2", "s_cbranch_scc1 L_NOPF2", "s_cmp_eq_u32 s18, 1", "s_cbranch_scc1 L_PF2V",
      "buffer_load_dword v69, v68, s[24:27], s36 offen", "s_branch L_NOPF2")
    a.label("L_PF2V")
    a("buffer_load_dword v69, v68, s[28:31], s36 offen")
    a.label("L_NOPF2")
    a("s_lshl_b32 s36, s22, 18", "s_lshl_b32 s37, s23, 7", f"s_sub_u32 s37, {3968 + WS_XI}, s37", "s_add_u32 s36, s36, s37")
    a.srd(52, 4, "s36", 63 * 4096 + 128)
    a("s_lshl_b32 s36, s22, 11", "s_add_u32 s38, s38, s36")
    a("s_waitcnt vmcnt(0)", "s_mov_b32 s36, 0xffff0000")
    for j in range(4):
        for e in range(2):
            src = WR + 2 * e + (j >> 1)
            a(f"v_lshlrev_b32 v{W8+2*j+e}, 16, v{src}" if j % 2 == 0 else f"v_and_b32 v{W8+2*j+e}, s36, v{src}")
    def unpack(dst, src): a(f"v_lshlrev_b32 v{dst}, 16, v{src}", f"v_and_b32 v{dst+1}, s36, v{src}")
    for i in range(3): unpack(KU + 2 * (i % 4), KR + i)
    for tau in range(8):
        ki = tau + 3
        unpack(KU + 2 * (ki % 4), KR + ki); unpack(VU, VR_ + tau)
        d = XV + 2 * (tau & 1); kk = lambda j: KU + 2 * ((ki - j) % 4)
        a(f"v_pk_mul_f32 {vr(d,2)}, {vr(kk(3),2)}, {vr(W8+6,2)}")
        for j in (2, 1, 0): a(f"v_pk_fma_f32 {vr(d,2)}, {vr(kk(j),2)}, {vr(W8+2*j,2)}, {vr(d,2)}")
        a(f"v_pk_mul_f32 {vr(d,2)}, {vr(d,2)}, {vr(VU,2)}")
        if tau & 1:
            for e in range(2): a(f"v_cvt_pk_bf16_f32 v{CH + 4*e + (7 - tau) // 2}, v{XV+2+e}, v{XV+e}")
    a("s_cmp_eq_u32 s43, 4", "s_cbranch_scc0 L_PREPR1")
    a.lwait(M_QDONE, 8, slp=1)
    a("v_lshlrev_b32 v75, 2, v2")
    a.srd(48, 4, WS_XC, 4096)
    a("s_getreg_b32 s36, hwreg(HW_REG_XCC_ID)", "s_lshl_b32 s37, s16, 3", "s_add_u32 s37, s37, s17", "s_lshl_b32 s37, s37, 4", "s_lshl_b32 s40, s18, 2", "s_add_u32 s37, s37, s40",
      "v_mov_b32 v76, s36", "s_mov_b64 exec, 1", "buffer_store_dword v76, v75, s[48:51], s37 offen sc1", "s_mov_b64 exec, -1")
    a("s_branch L_PREPW")
    a.label("L_PREPR1")
    a.lwait(M_SR, 4, slp=1)
    a.label("L_PREPW")
    a(f"ds_write_b128 v64, {vr(CH,4)}", f"ds_write_b128 v64, {vr(CH+4,4)} offset:144")
    a.arrive(M_SJ)
    a.lwait(M_SJ, "s43", slp=1)
    a(f"ds_read_b128 {vr(CH,4)}, v65", f"ds_read_b128 {vr(CH+4,4)}, v65 offset:1152", "s_mov_b32 s36, 32768", "s_waitcnt lgkmcnt(0)")
    a(f"buffer_store_dwordx4 {vr(CH,4)}, v66, s[52:55], 0 offen sc1", f"buffer_store_dwordx4 {vr(CH+4,4)}, v66, s[52:55], s36 offen sc1")
    a.arrive(M_SR)
    a("s_cmp_lg_u32 s43, 4", "s_cbranch_scc1 L_PREPD", "s_mov_b32 s39, s38", "s_cmp_lt_u32 s19, 28", "s_cbranch_scc1 L_PREPD", "s_mov_b32 s43, 8", "s_add_u32 s21, s21, 4", "s_branch L_PREP")
    a.label("L_PREPD")
    a.flag("s38", 44)
    a("s_mov_b64 exec, 1", f"buffer_store_dword v{VT}, v{VT-3}, s[44:47], s39 offen sc1", "s_mov_b64 exec, -1")
    a.arrive(M_PREP)
    a.stamp(2)
    a("s_lshl_b32 s21, s18, 5", "s_add_u32 s21, s21, s19", "s_cmp_ge_u32 s21, 108", "s_cbranch_scc1 L_CONVNONE")
    if NOCONV: a("s_branch L_CONVNONE")
    a("s_sub_u32 s22, s21, 72", "s_lshl_b32 s22, s22, 1", "s_cmp_ge_u32 s21, 72", "s_cselect_b32 s21, s22, s21", "s_cselect_b32 s57, 1, 0",
      "s_mul_i32 s22, s3, 72", "s_add_u32 s21, s21, s22", "s_lshr_b32 s22, s21, 6", "s_and_b32 s23, s21, 63")
    a("v_lshrrev_b32 v4, 3, v1", "v_lshlrev_b32 v4, 9, v4", "v_and_b32 v5, 7, v1", "v_lshl_add_u32 v4, v5, 1, v4", "v_lshl_add_u32 v4, v3, 4, v4",
      "s_lshl_b32 s36, s57, 11", "s_add_u32 s36, s36, 18", "v_add_u32 v4, s36, v4", "v_subrev_u32 v5, 32, v4")
    a("v_sub_u32 v6, 31, v1", "v_add_u32 v6, v6, v3", "v_lshlrev_b32 v6, 4, v6", "v_lshlrev_b32 v7, 4, v2",
      "s_mul_i32 s43, s18, 4608", "v_add_u32 v6, s43, v6")
    a("s_lshl_b32 s36, s21, 12", f"s_add_u32 s38, s36, {WS_XI}", "s_lshl_b32 s39, s22, 11", f"s_add_u32 s39, s39, {WS_FY}")
    a.srd(44, 14, "s36", 4096); a.srd(32, 4, "s38", 8192); a.srd(24, 4, "s39", 2048); a.srd(52, 4, WS_RDY, 32768); a.srd(48, 12, 0, 1152)
    a("s_mul_i32 s36, s21, 6144", f"s_add_u32 s36, s36, {WS_Y}")
    a.srd(28, 4, "s36", 12288)
    AF, AC, BR, D = 8, 72, 116, CONVD
    X5 = AC + 28
    def aload(ph, base1):
        r, o = (112, 32 * (ph - 1)) if base1 else (113, 32 * ph)
        a(f"buffer_load_dwordx4 {vr(AF+4*ph,4)}, v{r}, s[44:47], 0 offen offset:{o}", f"buffer_load_dword v{X5x(ph)}, v{r}, s[44:47], 0 offen offset:{o+16}")
    X5x = lambda ph: (X5 + ph) if ph < 12 else (BR + 4 + ph - 12)
    def afix(p0):
        for ph in range(p0, 16):
            for k in range(4): a(f"v_alignbit_b32 v{AF+4*ph+k}, v{AF+4*ph+k+1 if k < 3 else X5x(ph)}, v{AF+4*ph+k}, v114")
    def aloads(special):
        a("v_and_b32 v112, -4, v4", "v_and_b32 v113, -4, v5", "v_and_b32 v114, 2, v4", "v_lshlrev_b32 v114, 3, v114")
        for ph in range(1, 16): aload(ph, True)
        if not special:
            aload(0, False)
            a("s_waitcnt vmcnt(0)"); afix(0)
            return
        for k in range(8): a(f"v_add_u32 v{AC+k}, {2*k}, v5", f"buffer_load_ushort v{AC+8+k}, v{AC+k}, s[44:47], 0 offen")
        a("s_lshl_b32 s36, s21, 1", f"v_mov_b32 v{AC+16}, 0", f"buffer_load_ushort v{AC+17}, v{AC+16}, s[48:51], s36 offen", f"buffer_load_ushort v{AC+18}, v{AC+16}, s[44:47], 0 offen",
          "s_waitcnt vmcnt(0)", f"v_lshlrev_b32 v{AC+17}, 16, v{AC+17}", f"v_lshlrev_b32 v{AC+18}, 16, v{AC+18}", f"v_add_f32 v{AC+17}, v{AC+17}, v{AC+18}",
          f"v_cvt_pk_bf16_f32 v{AC+17}, v{AC+17}, 0")
        for k in range(8): a(f"v_cmp_eq_u32 vcc, 0, v{AC+k}", "s_nop 1", f"v_cndmask_b32 v{AC+8+k}, v{AC+8+k}, v{AC+17}, vcc")
        for k in range(4): a(f"v_lshl_or_b32 v{AF+k}, v{AC+9+2*k}, 16, v{AC+8+2*k}")
        afix(1)
    def zero(n):
        for k in range(n): a(f"v_mov_b32 v{AC+k}, 0")
    def run(nq, reload_a=False):
        seq = [(g, ph) for g in reversed(range(nq)) for ph in range(16)]
        def bload(i):
            g, ph = seq[i]
            a(f"ds_read_b128 {vr(BR + 4 * (i % D), 4)}, v6 offset:{32 * ph + (nq - 1 - g) * 512}")
        for i in range(D): bload(i)
        for i, (g, ph) in enumerate(seq):
            a(f"s_waitcnt lgkmcnt({min(D - 1, len(seq) - 1 - i)})")
            if i and i % 16 == 0: a.nop(8)
            if len(seq) - i == E("CBOOST", 0) // (2 if nq == 4 else 1): a("s_setprio 3")
            a(mfma(AC + 4 * g, AF + 4 * ph, BR + 4 * (i % D)))
            if i + D < len(seq): bload(i + D)
            if reload_a and g == 0 and ph < 12: aload(ph, False)
        if reload_a:
            for ph in range(12, 16): aload(ph, False)
        a.nop(12)
    def ystore(npiece, soff):
        a("s_setprio 3")
        for k in range(4 * npiece): a(f"v_cvt_pk_bf16_f32 v{AC+k}, v{AC+2*k}, v{AC+2*k+1}")
        for k in range(npiece): a(f"buffer_store_dwordx4 {vr(AC+4*k,4)}, v7, s[28:31], {soff} offen offset:{1024*k} sc1")
    def ready(isq):
        a("s_lshl_b32 s37, s2, 7", "s_lshl_b32 s38, s22, 2", "s_add_u32 s37, s37, s38")
        a.lwait(M_PASS2, 8, slp=8)
        a.gpoll(7, 52, 6, nl=1, soff="s37")
        a("s_mov_b32 m0, s43", "s_movk_i32 s37, 6144", "s_mov_b32 s38, 0x100000")
        for k in range(4): a(f"buffer_load_dwordx4 v7, s[32:35], {'s37' if isq and k < 2 else '0'} offen offset:{1024*k} sc1 lds")
        a("s_add_u32 m0, s43, 4096", "s_mov_b32 exec_hi, 0", "buffer_load_dwordx4 v7, s[32:35], s38 offen lds", "s_mov_b32 exec_hi, -1", "s_waitcnt vmcnt(0)")
        a.stamp(3)
        a(f"s_setprio {E('CPRIO', 0)}")
    a.lwait(M_PREP, 4, slp=2)
    a("s_cmp_eq_u32 s57, 1", "s_cbranch_scc1 L_CONVQ")
    aloads(True); zero(32); ready(False); run(8)
    a.stamp(4)
    ystore(4, "0")
    a("s_lshl_b32 s38, s23, 4", "s_mov_b64 s[50:51], 1", "s_branch L_CONVOUT")
    a.label("L_CONVQ")
    aloads(False); zero(16); ready(True)
    a("s_mov_b32 s41, 0", "s_movk_i32 s42, 4096", "s_add_u32 s44, s44, 4096", "s_addc_u32 s45, s45, 0", "v_add_u32 v6, 2048, v6")
    a.label("L_CONVQ2")
    run(4, True)
    ystore(2, "s42")
    a("s_cmp_eq_u32 s41, 1", "s_cbranch_scc1 L_CONVQD")
    a("s_mov_b32 s41, 1", f"s_movk_i32 s42, {4096+6144}", "s_mov_b32 s46, 0", "v_subrev_u32 v6, 2048, v6", f"v_lshl_add_u32 v{BR}, v2, 3, s43", "s_waitcnt vmcnt(0)")
    afix(0); zero(16)
    a(f"ds_write_b64 v{BR}, {vr(AC,2)} offset:2048", "s_waitcnt lgkmcnt(0)", f"s_setprio {E('CPRIO', 0)}", "s_branch L_CONVQ2")
    a.label("L_CONVQD")
    a.stamp(4)
    a("s_lshl_b32 s38, s23, 4", "s_add_u32 s38, s38, 1024", "s_mov_b64 s[50:51], 3")
    a.label("L_CONVOUT")
    a(f"v_mov_b32 v{VM}, {MISC}", f"v_mov_b32 v{VONE}, 1")
    a.flag("s38", 24, "s[50:51]")
    a.stamp(5)
    a.label("L_CONVNONE")
    a.arrive(M_CONV)
    a("s_mul_i32 s36, s16, 73728", "s_mul_i32 s37, s18, 18432", "s_add_u32 s36, s36, s37", f"s_add_u32 s36, s36, {WS_O}", f"s_add_u32 s43, s37, {O_B}")
    a.srd(24, 4, "s36", 18432)
    a("s_lshl_b32 s36, s16, 10", "s_lshl_b32 s37, s18, 8", "s_add_u32 s36, s36, s37", f"s_add_u32 s36, s36, {WS_FO}")
    a.srd(28, 4, "s36", 256)
    a("v_lshlrev_b32 v4, 4, v2", "s_lshl_b32 s37, s18, 3", f"v_add_u32 v7, s37, v{VM}", "v_mov_b32 v10, 8")
    a("s_mov_b32 s47, 0xffff", "s_mov_b32 s46, 3", "s_lshr_b32 s37, s17, 1", "s_cmp_lg_u32 s37, s18", "s_cbranch_scc1 L_GM",
      "s_bitcmp1_b32 s17, 0", "s_cselect_b32 s47, 0xff, s47", "s_cselect_b32 s46, 1, 2", "s_cbranch_scc1 L_GM", "s_mov_b32 s47, 0xff00")
    a.label("L_GM")
    a.lwait(M_ADONE, 6, slp=4)
    a("s_mov_b32 exec_lo, s47", "s_mov_b32 exec_hi, 0", "buffer_load_dword v8, v4, s[28:31], 0 offen sc1", "s_mov_b64 exec, -1", "s_mov_b32 s62, 0")
    a.lwait(M_ADONE, 8, slp=1)
    if E("GST", 0): a.stamp(3)
    a.label("L_GL")
    a("s_waitcnt vmcnt(0)", "v_cmp_ne_u32 vcc, s61, v8", "s_add_u32 s62, s62, 1", "s_and_b32 s47, s47, vcc_lo", f"s_cmp_ge_u32 s62, {POLL_MAX}", "s_cselect_b32 s47, 0, s47",
      "s_mov_b32 s48, 0")
    for mm in range(2):
        a(f"s_bitcmp1_b32 s46, {mm}", f"s_cbranch_scc0 L_GW{mm}", f"s_and_b32 s37, s47, {0xff << (8*mm)}", f"s_cbranch_scc1 L_GW{mm}")
        for b in range(9):
            if b % 4 == 0: a(f"s_add_u32 m0, s43, {9216*mm + 1024*b}", f"s_movk_i32 s37, {9216*mm + 1024*b}")
            a(f"buffer_load_dwordx4 v4, s[24:27], s37 offen offset:{1024*(b%4)} sc1 lds")
        a(f"s_bitset0_b32 s46, {mm}", f"s_bitset1_b32 s48, {mm}")
        a.label(f"L_GW{mm}")
    a("s_cmp_eq_u32 s48, 0", "s_cbranch_scc1 L_GN")
    a("s_cmp_lg_u32 s48, 3", "s_cbranch_scc1 L_G1", "s_waitcnt vmcnt(9)", "s_mov_b64 exec, 1", f"ds_add_u32 v7, v10 offset:{M_OC}", "s_mov_b32 s48, 2")
    a.label("L_G1")
    a("s_sub_u32 s48, s48, 1", "s_lshl_b32 s48, s48, 2", "s_mov_b64 exec, 1", "v_add_u32 v9, s48, v7", "s_waitcnt vmcnt(0)", f"ds_add_u32 v9, v10 offset:{M_OC}", "s_mov_b64 exec, -1")
    a("s_cmp_eq_u32 s46, 0", "s_cbranch_scc1 L_GD", "s_branch L_GP")
    a.label("L_GN")
    a(f"s_sleep {E('GSLP', 1)}")
    a.label("L_GP")
    a("s_mov_b32 exec_lo, s47", "s_mov_b32 exec_hi, 0", "buffer_load_dword v8, v4, s[28:31], 0 offen sc1", "s_mov_b64 exec, -1")
    if E("GST", 0): a.stamp(4)
    a("s_branch L_GL")
    a.label("L_GD")
    a.stamp(6)
    if E("GST", 0): a("s_waitcnt lgkmcnt(0)", "s_add_u32 s84, s64, s62")
    a.end("l")

def gen_loader(a):
    a.label("L_LOADER")
    a("s_memrealtime s[36:37]", "s_load_dwordx2 s[44:45], s[0:1], 80")
    a("v_mov_b32 v4, 0", f"v_lshl_add_u32 v5, v2, 2, v{VM}", "ds_write_b32 v5, v4", "v_lshlrev_b32 v6, 7, v2")
    a("s_movk_i32 s21, 7282", "v_add_u32 v10, 512, v2")
    piece_decode(a, 10, 11, 12, 13, 14, "s21")
    a("v_lshl_add_u32 v13, v11, 4, v13", "v_mul_u32_u24 v13, 1152, v13", "v_add_u32 v42, v13, v12")
    a("s_mul_i32 s21, s17, 144", f"s_sub_u32 s22, {576*1152}, s21")
    a("s_waitcnt lgkmcnt(0)")
    a.srd(24, 4, 0, 256)
    a("s_cmp_lg_u32 s2, 0", "s_cbranch_scc1 L_NONONCE")
    a("s_or_b32 s36, s36, 1", "v_mov_b32 v7, s36", "s_mov_b64 exec, 3", "buffer_store_dword v7, v6, s[24:27], 0 offen sc1", "s_mov_b64 exec, -1")
    a.label("L_NONONCE")
    a("s_mov_b32 s4, s6", "s_mov_b32 s5, s7")
    a.srd(48, 10, "s21", "s22")
    a.srd(40, 44, "s21", "s22")
    rot(a, "s36", "s37")
    a("s_barrier")
    def issue(p):
        a(f"s_mov_b32 m0, {W_B + (p % 7) * 9216 + 8192}", "s_mul_i32 s38, s36, 73728", "buffer_load_dwordx4 v42, s[48:51], s38 offen lds")
        if p < 8: next_chunk(a, "s36")
    for p in range(7): issue(p)
    a("v_lshlrev_b32 v8, 4, v2", "s_and_b32 s21, s2, 1", "s_lshl_b32 s21, s21, 7", "v_mov_b32 v6, s21")
    a("buffer_load_dword v7, v6, s[24:27], 0 offen sc1")
    a.srd(28, 4, WS_KV, KV_BYTES)
    a(f"s_and_b32 s21, s2, {NREP - 1}", "s_lshl_b32 s21, s21, 11", f"s_add_u32 s21, s21, {WS_FKV}")
    a.srd(32, 4, "s21", 2048)
    for p in range(7):
        a(f"s_waitcnt vmcnt({7 - p})"); a.arrive(M_CW + 4 * p)
    a("s_mov_b32 s62, 0")
    a.label("L_NP")
    a("s_add_u32 s62, s62, 1", "s_waitcnt vmcnt(0)", "v_readfirstlane_b32 s61, v7",
      "s_cmp_lg_u32 s61, 0", "s_cbranch_scc1 L_NPD", "s_mov_b32 s61, 1", f"s_cmp_ge_u32 s62, {POLL_MAX}", "s_cbranch_scc1 L_NPD", "s_sleep 4",
      "buffer_load_dword v7, v6, s[24:27], 0 offen sc1", "s_branch L_NP")
    a.label("L_NPD")
    a.lset(M_NONCE, "s61")
    a.stamp(1)
    for p in (7, 8):
        a.lwait(M_D0 + 4 * (p - 7), 8, slp=1); issue(p)
    for p in (7, 8):
        a(f"s_waitcnt vmcnt({8 - p})"); a.arrive(M_CW + 4 * p)
    if E("POLLAT", 9) <= 8: a.lwait(M_CW + 4 * E("POLLAT", 9), 5, slp=1)
    else: a.lwait(M_QDONE, E("POLLQ", 1), slp=1)
    a("s_mov_b32 s62, 0", "s_mov_b64 s[22:23], -1", "s_mov_b64 s[38:39], -1")
    a.label("L_KP")
    a("s_mov_b64 exec, s[22:23]", "s_cbranch_execz L_KP1", "buffer_load_dwordx2 v[14:15], v8, s[32:35], 0 offen sc1")
    a.label("L_KP1")
    a("s_mov_b64 exec, s[38:39]", "s_cbranch_execz L_KP2", "buffer_load_dwordx2 v[16:17], v8, s[32:35], 0 offen offset:1024 sc1")
    a.label("L_KP2")
    a("s_mov_b64 exec, -1", "s_add_u32 s62, s62, 1",
      "s_waitcnt vmcnt(0)", "v_cmp_ne_u32 s[22:23], s61, v14", "v_cmp_ne_u32 s[38:39], s61, v16", "s_or_b64 vcc, s[22:23], s[38:39]", "s_cmp_eq_u64 vcc, 0",
      "s_cbranch_scc1 L_KPD", f"s_cmp_ge_u32 s62, {POLL_MAX}", "s_cbranch_scc1 L_KPD", "s_sleep 2", "s_branch L_KP")
    a.label("L_KPD")
    a.stamp(2)
    pos = [0]
    def kvdma(n):
        for _ in range(n):
            i = pos[0]
            if i % 4 == 0: a(f"s_mov_b32 m0, {i * 1024}", "s_nop 0")
            a(f"buffer_load_dwordx4 v8, s[28:31], m0 offen offset:{(i % 4) * 1024} sc1 lds")
            pos[0] += 1
    kvdma(10)
    a("v_max_u32 v15, v15, v17")
    for sh in (8, 4, 2, 1): a("s_nop 1", f"v_max_u32_dpp v15, v15, v15 row_ror:{sh} row_mask:0xf bank_mask:0xf")
    a("s_nop 0", "v_readlane_b32 s36, v15, 0", "v_readlane_b32 s37, v15, 16", "v_readlane_b32 s38, v15, 32", "v_readlane_b32 s39, v15, 48",
      "s_max_u32 s36, s36, s37", "s_max_u32 s38, s38, s39", "s_max_u32 s36, s36, s38")
    a.lset(M_KMAX, "s36")
    kvdma(12)
    a("s_waitcnt vmcnt(12)"); a.lset(M_KVPROG, 2)
    a.stamp(3)
    a("s_waitcnt vmcnt(3)"); a.lset(M_KVPROG, 4)
    a.lwait(M_QDONE, 8, slp=0)
    KW = E("KVWIN", 8)
    done = 4
    while pos[0] < 148:
        kvdma(min(4 - pos[0] % 4, 148 - pos[0]))
        w = KW if pos[0] < 148 else 0
        a(f"s_waitcnt vmcnt({w})")
        rec = 32 if w == 0 else (pos[0] - w) * 1024 // REC
        if rec >= 32 or rec - done >= 2 and (rec <= 10 or rec - done >= 4):
            a.lset(M_KVPROG, rec); done = rec
    a.stamp(4)
    a("s_movk_i32 s21, 7282")
    for i in range(9):
        a(f"v_add_u32 v10, {64*i}, v2")
        piece_decode(a, 10, 11, 14, 15, 16, "s21")
        if i % 4: a(f"v_subrev_u32 v14, {(i % 4) * 1024}, v14")
        a("v_mul_u32_u24 v16, 18, v11", "v_add_u32 v16, v16, v15", "v_mul_u32_u24 v16, 1152, v16", f"v_add_u32 v{20+i}, v16, v14")
        a("v_lshrrev_b32 v16, 1, v15", "v_lshl_add_u32 v16, v11, 3, v16", "v_mul_u32_u24 v16, 18, v16", "v_and_b32 v15, 1, v15", "v_add3_u32 v16, v16, v15, 16",
          "v_mul_u32_u24 v16, 1152, v16", f"v_add_u32 v{30+i}, v16, v14")
    def woblocks(b0, b1, tag):
        a(f"s_mov_b32 m0, {b0*9216}", f"s_mov_b32 s21, {b0*72*1152}")
        a.label(f"L_WO{tag}")
        for i in range(9):
            a(f"buffer_load_dwordx4 v{20+i}, s[40:43], s21 offen offset:{(i % 4) * 1024} lds")
            if i in (3, 7): a("s_add_u32 m0, m0, 4096", "s_nop 0")
        a("s_add_u32 m0, m0, 1024", f"s_add_u32 s21, s21, {72*1152}", "s_waitcnt vmcnt(9)", f"s_cmp_lt_u32 s21, {b1*72*1152}", f"s_cbranch_scc1 L_WO{tag}")
    a.lwait(M_PASS3, 8, slp=32)
    a.srd(52, 4, WS_RDY, 32768)
    a("s_mul_i32 s21, s3, 36", "s_lshl_b32 s22, s20, 3", "s_add_u32 s21, s21, s22", "v_mul_u32_u24 v10, 7, v2", "v_add_u32 v10, s21, v10", "v_lshrrev_b32 v10, 5, v10",
      "v_lshlrev_b32 v10, 2, v10", "s_lshl_b32 s21, s2, 7")
    a.gpoll(10, 52, 8, nl=2, soff="s21")
    a.srd(52, 4, WS_XC, 4096)
    a("s_lshl_b32 s21, s16, 7", "s_getreg_b32 s22, hwreg(HW_REG_XCC_ID)", "s_mov_b64 exec, 0xff", "buffer_load_dword v10, v8, s[52:55], s21 offen sc1", "s_waitcnt vmcnt(0)",
      "v_cmp_ne_u32 vcc, s22, v10", "s_mov_b64 exec, -1", "s_cmp_eq_u64 vcc, 0", f"s_cselect_b32 s21, {E('OFAST', 2)}, 1")
    a.lset(M_PZ, "s21")
    woblocks(2, 5, 0)
    a("v_mul_u32_u24 v10, 1152, v2", "s_mov_b32 s21, 0")
    for i in range(3):
        a(f"buffer_load_dword v12, v10, s[40:43], s21 offen", f"buffer_load_dword v13, v10, s[40:43], s21 offen offset:128", "s_add_u32 s21, s21, 73728" if i else "s_add_u32 s21, s21, 18432")
    a.lwait(M_PASS, 8, slp=32)
    a.stamp(5)
    woblocks(5, 8, 1)
    for i in range(9):
        a(f"buffer_load_dwordx4 v{30+i}, s[40:43], 0 offen offset:{(i % 4) * 1024} lds")
        if i in (3, 7): a("s_add_u32 m0, m0, 4096", "s_nop 0")
    a.lwait(M_CONV, 4, slp=8)
    woblocks(0, 2, 2)
    a("s_waitcnt vmcnt(0)"); a.lset(M_WO, 1)
    a.stamp(6)
    a.end("d")

def gen(a):
    import gen4a
    kernel_head(a, NAME + "_kernel")
    a("s_cmp_ge_u32 s2, 256", "s_cbranch_scc1 L_END")
    a.stamp(0)
    a("s_load_dwordx4 s[8:11], s[0:1], 48", "s_load_dwordx4 s[12:15], s[0:1], 64", "s_load_dwordx4 s[4:7], s[0:1], 96")
    a("v_lshrrev_b32 v1, 6, v0", "v_and_b32 v2, 63, v0", "s_and_b32 s3, s2, 7", "v_readfirstlane_b32 s18, v1")
    a("s_lshr_b32 s19, s2, 3", "s_and_b32 s17, s19, 7", "s_lshr_b32 s20, s19, 3", "s_lshl_b32 s16, s3, 2", "s_add_u32 s16, s16, s20")
    a("v_and_b32 v1, 31, v2", "v_lshrrev_b32 v3, 5, v2", f"v_mov_b32 v{VM}, {MISC}", f"v_mov_b32 v{VONE}, 1")
    if E("CODEPF", 1):
        a("s_cmp_lg_u32 s18, 8", "s_cbranch_scc1 L_NOPF", "s_getpc_b64 s[36:37]")
        a.label("L_PC")
        a("v_lshl_add_u32 v10, v1, 3, s17", "v_lshlrev_b32 v10, 7, v10", f"v_min_u32 v10, L_CODE_END - L_PC - 4, v10",
          "v_mov_b32 v11, s37", "v_add_co_u32 v10, vcc, s36, v10", "s_mov_b32 exec_hi, 0", "s_nop 0",
          "v_addc_co_u32 v11, vcc, 0, v11, vcc", "global_load_dword v120, v[10:11], off", "s_mov_b32 exec_hi, -1")
        a.label("L_NOPF")
    a("s_cmp_ge_u32 s18, 8", "s_cbranch_scc1 L_ATT", "s_setprio 3", "s_cmp_ge_u32 s18, 4", "s_cbranch_scc1 L_LW", "s_cmp_eq_u32 s18, 3", "s_cbranch_scc1 L_LOADER")
    gen_h(a); gen_l(a); gen_loader(a); gen4a.gen_a(a)
    a.label("L_END")
    a("s_endpgm")
    a.label("L_CODE_END")

def build():
    hdr = open("cdna_kernels/" + NAME + ".s.ref").read().split("; Override launch")[0]
    a = F()
    L = [hdr.rstrip(), f"; @launch grid=(256,1,1) block=(1024,1,1) lds={LDS_BYTES}", '.amdgcn_target "amdgcn-amd-amdhsa--gfx950"', ".text"]
    gen(a)
    L += [("  " + l if not l.endswith(":") and not l.startswith(".") else l) for l in a.L]
    L.append('.section .rodata,"a"')
    L += kd(NAME + "_kernel", NVGPR, 100)
    return "\n".join(L) + "\n"

if __name__ == "__main__":
    out = sys.argv[1] if len(sys.argv) > 1 else "cdna_kernels/" + NAME + ".s"
    open(out, "w").write(build())
    print("wrote", out)
```

```python
import sys, os
from gen import A, kd, kernel_head, mfma, swap23, f32bits, QSCALE, NAME, STAMP, vr
from attn_core import attn_iter, REC

KV_BYTES = 32 * REC
WS_KV  = 0x000000
WS_FKV = 0x030000
WS_FO  = 0x040000
WS_FP  = 0x060000
WS_XC  = 0x048000
WS_FY  = 0x04C000
WS_RDY = 0x052000
WS_O   = 0x0A0000
WS_Y   = 0x640000
WS_XI  = 0x300000
X_B = 23040; W_B = X_B + 73728; MISC = W_B + 64512; LDS_BYTES = 163840
SCR_B = 151552; O_B = 87552
M_CW = 0; M_D0 = 36; M_KVRED = 44; M_QDONE = 48; M_NONCE = 52; M_KVPROG = 56; M_KMAX = 60; M_PREP = 64; M_PASS3 = 68; M_PASS = 72
M_WO = 76; M_ADONE = 80; M_OPROG = 84; M_RED = 88; M_CONV = 96; M_SJ = 100; M_SR = 104; M_PASS2 = 108; M_PZ = 112; M_OC = 128; M_REDBUF = 512
VM, VONE, VT = 125, 126, 127
NVGPR = 128
R = dict(O=72, idx=7, V=88, Km=104, Kt=112, Qm=116, Qt=114, aK=4, aT=5, aV=6)
SX, SY = 8, 40
POLL_MAX = 1 << 15
E = lambda k, d: int(os.environ.get(k, d))
NREP = E("NREP", 8)
OPOL = os.environ.get("OPOL", "")
OPOLA = os.environ.get("OPOLA", "")
ROT, QST, CONVD, LWIN, NOCONV = E("ROT", 1), E("QST", 0), E("CONVD", 2), E("LWIN", 3), E("NOCONV", 0)

class F(A):
    n = 0
    def uid(s, p):
        s.n += 1; return f"{p}_{s.n}"
    def arrive(s, off):
        s("s_mov_b64 exec, 1", f"ds_add_u32 v{VM}, v{VONE} offset:{off}", "s_mov_b64 exec, -1")
    def lwait(s, off, target, sreg="s60", slp=1):
        l = s.uid("LW")
        s.label(l)
        s(f"ds_read_b32 v{VT}, v{VM} offset:{off}", "s_waitcnt lgkmcnt(0)", f"v_readfirstlane_b32 {sreg}, v{VT}", f"s_cmp_ge_u32 {sreg}, {target}")
        if slp: s(f"s_cbranch_scc1 {l}_d", f"s_sleep {slp}", f"s_branch {l}"); s.label(l + "_d")
        else: s(f"s_cbranch_scc0 {l}")
    def lset(s, off, val):
        s(f"v_mov_b32 v{VT}, {val}", "s_mov_b64 exec, 1", f"ds_write_b32 v{VM}, v{VT} offset:{off}", "s_mov_b64 exec, -1")
    def nonce(s, slp=1): s.lwait(M_NONCE, 1, "s61", slp)
    def gpoll(s, voff, srd, slp, nl=64, soff="0", off=0):
        l = s.uid("GP")
        if nl < 64: s(f"s_mov_b32 exec_lo, {(1 << nl) - 1}", "s_mov_b32 exec_hi, 0")
        s("s_mov_b32 s62, 0")
        s.label(l)
        s(f"buffer_load_dword v{VT}, v{voff}, s[{srd}:{srd+3}], {soff} offen offset:{off} sc1", "s_add_u32 s62, s62, 1", "s_waitcnt vmcnt(0)",
          f"v_cmp_ne_u32 vcc, s61, v{VT}", "s_cmp_eq_u64 vcc, 0", f"s_cbranch_scc1 {l}_d", "s_mov_b64 exec, vcc",
          f"s_cmp_ge_u32 s62, {POLL_MAX}", f"s_cbranch_scc1 {l}_d", f"s_sleep {slp}", f"s_branch {l}")
        s.label(l + "_d")
        s("s_mov_b64 exec, -1")
    def broadcast(s, word_sreg, t):
        s("s_mul_i32 s58, s22, 58255", "s_lshr_b32 s58, s58, 16", f"v_lshlrev_b32 v{t}, 3, v1", f"v_add3_u32 v{t}, v{t}, v3, s58", f"v_lshlrev_b32 v{t}, 7, v{t}",
          f"v_mov_b32 v{VT}, s61", "s_cmp_eq_u32 s58, 7", "s_cselect_b32 exec_hi, 0, -1",
          f"buffer_store_dword v{VT}, v{t}, s[52:55], {word_sreg} offen sc1", "s_mov_b32 exec_hi, -1")
    def flag(s, off_sreg, srd, n=1):
        s(f"v_mov_b32 v{VT}, s61", f"v_lshlrev_b32 v{VT-3}, 4, v2", f"s_mov_b64 exec, {n}" if isinstance(n, str) else f"s_mov_b64 exec, {(1 << n) - 1}", "s_waitcnt vmcnt(0)",
          f"buffer_store_dword v{VT}, v{VT-3}, s[{srd}:{srd+3}], {off_sreg} offen sc1", "s_mov_b64 exec, -1")
    def end(s, role="x"):
        if STAMP == 3:
            k, r = os.environ["DIAG"][1:], os.environ["DIAG"][0]
            if r == role:
                l = s.uid("DG")
                s("s_mov_b64 exec, -1", "s_waitcnt vmcnt(0) lgkmcnt(0)"); s.stamp(7)
                s(f"v_mov_b32 v{VM}, {MISC}"); s.nonce()
                if k == "n": s("s_movk_i32 s56, 6000")
                elif k == "m": s("s_sub_u32 s56, s61, s66", "s_max_i32 s56, s56, 0", "s_min_u32 s56, s56, 6000", "s_lshl_b32 s56, s56, 2", "s_add_u32 s56, s56, 6000")
                else: s(f"s_sub_u32 s56, s{66 + 4 * int(k)}, s61", "s_max_i32 s56, s56, 0", "s_min_u32 s56, s56, 6000", "s_lshl_b32 s56, s56, 2", "s_add_u32 s56, s56, 6000")
                s.label(l)
                s("s_sleep 2", "s_memrealtime s[58:59]", "s_waitcnt lgkmcnt(0)", "s_sub_u32 s58, s58, s61", "s_cmp_lt_u32 s58, s56", f"s_cbranch_scc1 {l}")
            s("s_endpgm"); return
        s.stamp_out(0, 7, 8); s("s_endpgm")

def tr_lane(a, dst, stride, t0, t1, tp=False):
    if tp: a(f"v_and_b32 v{t0}, 12, v2", f"v_lshl_add_u32 v{t0}, v3, 1, v{t0}")
    else: a(f"v_bfe_u32 v{t0}, v2, 2, 2", f"v_lshl_add_u32 v{t0}, v3, 3, v{t0}")
    a(f"v_mul_u32_u24 v{dst}, {stride}, v{t0}",
      f"v_bfe_u32 v{t0}, v2, 4, 1", f"v_bfe_u32 v{t1}, v2, 1, 1", f"v_lshl_add_u32 v{t0}, v{t0}, 1, v{t1}", f"v_and_b32 v{t1}, 1, v2")

def x_dma_voff(a, d, t0, t1):
    a(f"v_lshrrev_b32 v{t0}, 3, v2", f"v_mul_u32_u24 v{d}, 1152, v{t0}", f"v_and_b32 v{t0}, 7, v2", f"v_lshrrev_b32 v{t1}, 4, v2", f"v_xor_b32 v{t0}, v{t0}, v{t1}",
      f"v_lshl_add_u32 v{d}, v{t0}, 4, v{d}")

def x_frag_addr(a, d, rowtile_sreg, t0):
    a(f"v_bfe_u32 v{t0}, v1, 1, 3", f"v_xor_b32 v{t0}, v{t0}, v3", f"v_lshlrev_b32 v{d}, 4, v{t0}", f"v_lshl_add_u32 v{d}, v1, 7, v{d}",
      f"s_lshl_b32 s60, {rowtile_sreg}, 12", f"s_add_u32 s60, s60, {X_B}", f"v_add_u32 v{d}, s60, v{d}")
    for i in (1, 2, 3): a(f"v_xor_b32 v{d+i}, {32*i}, v{d}")

def piece_decode(a, e, pos, c16, kk, t, magic):
    a(f"v_mul_u32_u24 v{pos}, {magic}, v{e}", f"v_lshrrev_b32 v{pos}, 16, v{pos}", f"v_mul_u32_u24 v{c16}, 9, v{pos}", f"v_sub_u32 v{c16}, v{e}, v{c16}",
      f"v_lshlrev_b32 v{c16}, 4, v{c16}", f"v_and_b32 v{kk}, 3, v{pos}", f"v_bfe_u32 v{t}, v{pos}, 2, 2", f"v_lshl_add_u32 v{kk}, v{kk}, 2, v{t}", f"v_lshrrev_b32 v{pos}, 4, v{pos}")

def next_chunk(a, c, delta_pairs=()):
    a(f"s_add_u32 {c}, {c}, 1", f"s_cmp_eq_u32 {c}, 9", f"s_cselect_b32 {c}, 0, {c}")
    for sreg, step in delta_pairs: a(f"s_movk_i32 {sreg}, {step}", f"s_cselect_b32 {sreg}, {(-8*step) & 0xffffffff}, {sreg}")

def rot(a, d, t):
    if ROT: a(f"s_lshl_b32 {d}, s20, 1", f"s_add_u32 {d}, {d}, s17", f"s_sub_u32 {t}, {d}, 9", f"s_cmp_ge_u32 {d}, 9", f"s_cselect_b32 {d}, {t}, {d}")
    else: a(f"s_mov_b32 {d}, 0")

def stream_positions(a, issue, per):
    for p in range(9 + LWIN):
        if p == E("BARAT", 1): a("s_barrier")
        if p < 9:
            if p >= 7: a.lwait(M_D0 + 4 * (p - 7), 8, slp=1)
            issue(p)
        q = p - LWIN
        if q >= 0:
            a(f"s_waitcnt vmcnt({per * (min(p, 8) - q)})"); a.arrive(M_CW + 4 * q)

def gen_h(a):
    a("s_cmp_ge_u32 s17, 4", "s_cbranch_scc1 L_NOWKV")
    x_dma_voff(a, 40, 41, 42)
    a("v_xor_b32 v41, 64, v40")
    a("s_and_b32 s21, s17, 1", "s_lshl_b32 s22, s16, 1", "s_add_u32 s22, s22, s21", "s_mul_i32 s22, s22, 36864", "s_mul_i32 s23, s18, 384", "s_add_u32 s36, s22, s23",
      "s_mul_i32 s37, s18, 24576", "s_lshl_b32 s23, s21, 12", "s_add_u32 s37, s37, s23", f"s_add_u32 s37, s37, {X_B}")
    a("s_movk_i32 s22, 6554")
    for i in range(5):
        a(f"v_add_u32 v6, {64*i}, v2", "v_mul_u32_u24 v7, s22, v6", "v_lshrrev_b32 v7, 16, v7", "v_sub_u32 v7, v2, v7", f"v_lshl_add_u32 v{8+i}, v7, 2, 64", f"v_add_u32 v{8+i}, 192, v{8+i}")
    a("s_mul_i32 s22, s18, 6912", "s_sub_u32 s22, s22, 256", "s_ashr_i32 s39, s22, 31", "s_mul_i32 s23, s18, 7680", "s_mul_i32 s38, s18, 24576")
    x_frag_addr(a, 44, "s21", 43)
    for i in range(4): a(f"v_add_u32 v{44+i}, s38, v{44+i}")
    a("s_waitcnt lgkmcnt(0)")
    a("s_cmp_ge_u32 s17, 2", "s_cselect_b32 s24, s14, s12", "s_cselect_b32 s25, s15, s13", "s_add_u32 s24, s24, s22", "s_addc_u32 s25, s25, s39",
      f"s_mov_b32 s26, {6912+256}", "s_mov_b32 s27, 0x20000")
    a.srd(28, 8, "s36", 31 * 1152 + 384)
    for c in range(3):
        for q in range(4):
            a(f"s_add_u32 m0, s37, {c*8192 + q*1024}", f"s_mov_b32 s38, {q*9216 + c*128}", f"buffer_load_dwordx4 v{40 + (q & 1)}, s[28:31], s38 offen lds")
        for g in range(2 * c, 2 * c + 2):
            a(f"s_add_u32 m0, s23, {g*1280}", f"s_movk_i32 s38, {g*1152}")
            for i in range(5): a(f"buffer_load_dword v{8+i}, s[24:27], s38 offen offset:{256*i} lds")
    a("s_barrier")
    a("s_mov_b32 s4, s6", "s_mov_b32 s5, s7")
    tr_lane(a, 48, 40, 49, 50)
    a("v_lshlrev_b32 v50, 4, v50", "v_lshl_add_u32 v50, v49, 3, v50", "v_cmp_lt_u32 vcc, 1, v49", "v_lshlrev_b32 v53, 4, v2", "v_add_u32 v57, s23, v53",
      "v_cndmask_b32 v50, v50, 32, vcc", "v_add3_u32 v48, v48, v50, s23")
    a(f"s_mul_i32 s22, s16, {REC}")
    a.srd(24, 4, "s22", REC)
    a.srd(28, 4, WS_FKV, 65536)
    swap23(a, 52, 1, 54)
    a.stamp(1); a.stamp(2)
    FR, QF, QD = 24, 64, 5
    def reads(i):
        b = QF + 8 * (i % QD)
        if i % 4 == 0: a(f"s_waitcnt vmcnt({14 * (2 - i // 4)})")
        if i == 8: a.arrive(M_CW); a.stamp(3)
        a(f"ds_read_b128 {vr(b,4)}, v{44 + i % 4} offset:{(i // 4) * 8192}", f"ds_read_b64_tr_b16 {vr(b+4,2)}, v48 offset:{i*640}",
          f"ds_read_b64_tr_b16 {vr(b+6,2)}, v48 offset:{i*640+160}")
    def proj(isv):
        for i in range(12):
            if i + QD - 1 < 12: reads(i + QD - 1)
            a(f"s_waitcnt lgkmcnt({3 * min(QD - 1, 11 - i)})")
            b = QF + 8 * (i % QD)
            c = "0" if i == 0 else None
            a(mfma(8, b, b + 4, c) if isv else mfma(8, b + 4, b, c))
    for i in range(QD - 1): reads(i)
    a("s_cmp_ge_u32 s17, 2", "s_cbranch_scc1 L_VP")
    proj(False)
    a("s_branch L_KVRED")
    a.label("L_VP")
    proj(True)
    a.label("L_KVRED")
    a("s_cmp_eq_u32 s18, 0", "s_cbranch_scc1 L_KVH0")
    a.nop(10)
    for i in range(4): a(f"ds_write_b128 v57, {vr(8+4*i,4)} offset:{1024*i}")
    a.arrive(M_KVRED)
    a("s_branch L_EPI")
    a.label("L_KVH0")
    a.stamp(4)
    a.nop(4)
    a.lwait(M_KVRED, 2, slp=0)
    for w in range(2):
        for i in range(4): a(f"ds_read_b128 {vr(64+16*w+4*i,4)}, v53 offset:{7680*(w+1) + 1024*i}")
    for w in range(2):
        a(f"s_waitcnt lgkmcnt({4 - 4*w})")
        for i in range(8): a(f"v_pk_add_f32 {vr(8+2*i,2)}, {vr(8+2*i,2)}, {vr(64+16*w+2*i,2)}")
    a.stamp(5)
    a("s_cmp_ge_u32 s17, 2", "s_cbranch_scc1 L_VPROJ")
    a("s_lshl_b32 s23, s21, 10", "v_lshlrev_b32 v54, 4, v52", "v_lshl_add_u32 v54, v3, 9, v54",
      "s_lshl_b32 s22, s21, 7", "s_add_u32 s22, s22, 2048", "v_lshlrev_b32 v55, 2, v52", "v_cmp_eq_u32 vcc, 0, v3", "v_mov_b32 v61, 0")
    for i in range(5): a(f"v_cvt_pk_bf16_f32 v{FR+i}, v{8+2*i}, v{9+2*i}")
    a(f"buffer_store_dwordx4 {vr(FR,4)}, v54, s[24:27], s23 offen sc1", "s_mov_b32 exec_hi, 0",
      f"buffer_store_dword v{FR+4}, v55, s[24:27], s22 offen sc1", "s_mov_b32 exec_hi, -1")
    a(f"v_cndmask_b32 v56, 0, v{FR+4}, vcc")
    for r in [FR, FR + 1, FR + 2, FR + 3, 56]: a(f"v_dot2_f32_bf16 v61, v{r}, v{r}, v61")
    a("s_nop 2", "v_mov_b32 v56, v61", "s_nop 1", "v_permlane32_swap_b32 v61, v56", "s_nop 1", "v_add_f32 v61, v61, v56")
    for sh in (8, 4, 2, 1): a("s_nop 1", f"v_max_u32_dpp v61, v61, v61 row_ror:{sh} row_mask:0xf bank_mask:0xf")
    a("s_nop 0", "v_readlane_b32 s22, v61, 0", "v_readlane_b32 s23, v61, 16", "s_max_u32 s22, s22, s23", "s_branch L_KVFLAG")
    a.label("L_VPROJ")
    a("s_mul_i32 s23, s21, 1216", "s_add_u32 s23, s23, 2304", "v_mul_u32_u24 v54, 304, v3", "v_lshl_add_u32 v54, v1, 4, v54",
      "v_cmp_eq_u32 vcc, 18, v1", "v_mov_b32 v55, 0x3f803f80", "v_cmp_gt_u32 s[40:41], 19, v1")
    for i in range(8): a(f"v_cvt_pk_bf16_f32 v{FR+i}, v{8+2*i}, v{9+2*i}")
    for i in range(8): a(f"v_cndmask_b32 v{FR+i}, v{FR+i}, v55, vcc")
    a("s_mov_b64 exec, s[40:41]", f"buffer_store_dwordx4 {vr(FR,4)}, v54, s[24:27], s23 offen sc1",
      f"buffer_store_dwordx4 {vr(FR+4,4)}, v54, s[24:27], s23 offen offset:608 sc1", "s_mov_b64 exec, -1", "s_mov_b32 s22, 0")
    a.label("L_KVFLAG")
    a.nonce()
    a("s_lshl_b32 s23, s16, 2", "s_add_u32 s23, s23, s17", "s_lshl_b32 s23, s23, 4", "v_lshlrev_b32 v56, 11, v2", "v_mov_b32 v58, s61", "v_mov_b32 v59, s22",
      f"s_mov_b32 exec_lo, {(1 << NREP) - 1}", "s_mov_b32 exec_hi, 0", "s_waitcnt vmcnt(0)", "buffer_store_dwordx2 v[58:59], v56, s[28:31], s23 offen sc1")
    a.stamp(6)
    a.end("k")
    a.label("L_NOWKV")
    a("s_waitcnt lgkmcnt(0)", "s_mov_b32 s4, s6", "s_mov_b32 s5, s7", "s_barrier")
    a.arrive(M_CW)
    if E("TLBW", 1):
        a("s_cmp_lg_u32 s18, 1", "s_cbranch_scc1 L_NOTLB")
        a("s_load_dwordx16 s[24:39], s[0:1], 0", "s_load_dwordx4 s[40:43], s[0:1], 80", "s_mov_b32 s44, 0x2f0000", "s_mov_b32 s45, 0x5f0000", "s_mov_b32 s46, 0x600000",
          "s_mov_b32 s47, 0x9f0000", f"s_mov_b32 s48, {WS_RDY + 0x8000}", "s_mov_b32 s49, 0x23ff00")
        for off in ("s48", "s44", "s45", "s46", "s47"): a(f"s_load_dword s52, s[4:5], {off}")
        a("s_waitcnt lgkmcnt(0)")
        for b in (24, 26, 28, 32): a(f"s_load_dword s52, s[{b}:{b+1}], 0", f"s_load_dword s52, s[{b}:{b+1}], s49")
        a("s_load_dword s52, s[40:41], 0",
          "s_load_dword s52, s[30:31], 0", "s_load_dword s52, s[34:35], 0", "s_waitcnt lgkmcnt(0)")
        a.label("L_NOTLB")
    a("s_cmp_lg_u32 s18, 0", "s_cbranch_scc1 L_EPI", "s_cmp_ge_u32 s17, 6", "s_cbranch_scc1 L_EPI")
    a("s_endpgm")
    a.label("L_EPI")
    if NOCONV: a.end()
    a("s_load_dwordx2 s[8:9], s[0:1], 0", "s_load_dwordx2 s[10:11], s[0:1], 88")
    a("s_sub_u32 s21, s18, 1", "s_lshl_b32 s21, s21, 5", "s_add_u32 s21, s21, s19",
      "s_lshl_b32 s22, s20, 1", "s_add_u32 s22, s22, s17", "s_add_u32 s22, s22, 58", "s_cmp_eq_u32 s18, 0", "s_cselect_b32 s21, s22, s21",
      "s_mul_i32 s22, s3, 72", "s_add_u32 s21, s21, s22", "s_lshr_b32 s22, s21, 6", "s_and_b32 s23, s21, 63")
    a.nonce(24)
    a.srd(52, 4, WS_RDY, 32768)
    a("v_lshlrev_b32 v110, 4, v2", "s_lshl_b32 s57, s22, 2")
    a.stamp(1)
    a("s_cmp_lg_u32 s23, 0", "s_cbranch_scc1 L_NOAGG1")
    a("s_lshl_b32 s37, s22, 11", f"s_add_u32 s37, s37, {WS_FP}")
    a.srd(24, 4, "s37", 2048)
    a.lwait(M_PREP, 4, slp=4)
    a.gpoll(110, 24, 2); a.gpoll(110, 24, 2, off=1024)
    a.broadcast("s57", 111)
    a.label("L_NOAGG1")
    a.stamp(2); a.stamp(3); a.stamp(4)
    a("s_lshl_b32 s37, s22, 11", f"s_add_u32 s37, s37, {WS_FY}")
    a.srd(24, 4, "s37", 2048)
    a("s_bfe_u32 s56, s23, 0x10005", "s_lshr_b32 s38, s23, 4", "s_lshl_b32 s38, s38, 9", "s_bfe_u32 s37, s23, 0x10003", "s_lshl_b32 s37, s37, 2", "s_add_u32 s38, s38, s37",
      "s_and_b32 s37, s23, 7", "s_lshl_b32 s37, s37, 5", "s_add_u32 s38, s38, s37")
    a("s_lshl_b32 s37, s22, 7", "s_mul_i32 s39, s38, 1152", "s_add_u32 s39, s39, s37", "s_mul_i32 s38, s38, 2304", "s_add_u32 s38, s38, s37")
    a("v_mul_u32_u24 v4, 9216, v3", "v_lshl_add_u32 v4, v1, 2, v4", "v_add_u32 v4, s39, v4",
      "v_mul_u32_u24 v5, 18432, v3", "v_lshl_add_u32 v5, v1, 2, v5", "v_add_u32 v5, s38, v5",
      "v_mul_u32_u24 v6, 12288, v1", "v_lshl_add_u32 v6, v3, 4, v6", "s_lshl_b32 s37, s23, 6", "v_add_u32 v6, s37, v6", "v_add_u32 v7, 6144, v6")
    a(f"s_mul_i32 s37, s22, {64*6144}", f"s_add_u32 s37, s37, {WS_Y}")
    a.srd(32, 4, "s37", 64 * 6144)
    a.srd(40, 8, 0, 2359296); a.srd(44, 10, 0, 4718592)
    a.lwait(M_PASS3, 8, slp=32)
    rows = [0, 1, 2, 3, 256, 257, 258, 259]
    for i in range(2):
        for j, r in enumerate(rows): a(f"s_mov_b32 s37, {(r + 16*i)*1152}", f"buffer_load_dword v{64+8*i+j}, v4, s[40:43], s37 offen")
    a.lwait(M_CONV, 4, slp=8)
    a.stamp(5)
    a("s_add_u32 s57, s57, 64", "s_cmp_lg_u32 s23, 0", "s_cbranch_scc1 L_NOAGG2")
    a.gpoll(110, 24, 2); a.gpoll(110, 24, 2, off=1024)
    a.broadcast("s57", 111)
    a.label("L_NOAGG2")
    a("s_lshl_b32 s37, s2, 7", "s_add_u32 s37, s37, s57")
    a.gpoll(110, 52, 4, nl=1, soff="s37")
    a.stamp(6)
    for i in range(2):
        a(f"buffer_load_dwordx4 {vr(8+8*i,4)}, v6, s[32:35], 0 offen offset:{32*i} sc1", f"buffer_load_dwordx4 {vr(12+8*i,4)}, v7, s[32:35], 0 offen offset:{32*i} sc1")
    a("s_cmp_eq_u32 s56, 1", "s_cselect_b32 s37, 0, 0x1000000")
    for i in range(2):
        a(f"buffer_load_dwordx4 {vr(80+8*i,4)}, v6, s[32:35], s37 offen offset:{2048+32*i} sc1", f"buffer_load_dwordx4 {vr(84+8*i,4)}, v7, s[32:35], s37 offen offset:{2048+32*i} sc1")
    a("s_mov_b32 s36, 0xffff0000")
    for i in range(2):
        a(f"s_waitcnt vmcnt({2 if i == 0 else 8})")
        for j, r in enumerate(rows):
            t = 32 + 8 * (j & 1); q = 64 + 8 * i + j
            for e in range(2):
                for k, base in enumerate((8, 80)):
                    src = base + 8 * i + 4 * e + (j >> 1)
                    a(f"v_lshlrev_b32 v{t+4*k+e}, 16, v{src}" if j % 2 == 0 else f"v_and_b32 v{t+4*k+e}, s36, v{src}")
            a(f"v_lshlrev_b32 v{t+2}, 16, v{q}", f"v_and_b32 v{t+3}, s36, v{q}", f"v_pk_add_f32 {vr(t,2)}, {vr(t,2)}, {vr(t+4,2)}",
              f"v_pk_mul_f32 {vr(t,2)}, {vr(t,2)}, {vr(t+2,2)}",
              f"v_cvt_pk_bf16_f32 v{q}, v{t}, v{t+1}", f"s_mov_b32 s37, {(r + 16*i)*2304}", f"buffer_store_dword v{q}, v5, s[44:47], s37 offen {OPOLA}")
    a.end("e")

def gen_l(a):
    a.label("L_LW")
    a("s_sub_u32 s18, s18, 4")
    x_dma_voff(a, 40, 41, 42)
    a("v_xor_b32 v41, 64, v40", "v_add_u32 v41, 8192, v41")
    a("s_movk_i32 s21, 7282", "s_lshl_b32 s22, s18, 7")
    for e in range(2):
        a(f"v_add_u32 v10, s22, v2" if e == 0 else "v_add_u32 v10, 64, v10")
        piece_decode(a, 10, 11, 12, 13, 14, "s21")
        a("v_lshl_add_u32 v13, v11, 4, v13", "v_mul_u32_u24 v13, 1152, v13", f"v_add_u32 v{42+e}, v13, v12")
    a("v_subrev_u32 v43, 1024, v43")
    rot(a, "s36", "s37")
    a("s_mul_i32 s22, s16, 73728", "s_mul_i32 s23, s18, 18432", "s_add_u32 s22, s22, s23", "s_lshl_b32 s47, s18, 11", f"s_add_u32 s37, s47, {W_B}", f"s_add_u32 s47, s47, {X_B}")
    a("s_lshr_b32 s38, s18, 1", "s_xor_b32 s38, s38, s17", "s_and_b32 s38, s38, 5", "s_cmp_eq_u32 s38, 0", "s_cselect_b64 s[48:49], 1, -1")
    a("s_mul_i32 s23, s17, 144", f"s_sub_u32 s38, {576*1152}, s23")
    a("s_waitcnt lgkmcnt(0)")
    a.srd(24, 8, "s22", 18432)
    a.srd(28, 10, "s23", "s38")
    a("s_mov_b32 s4, s6", "s_mov_b32 s5, s7", "s_load_dwordx2 s[14:15], s[0:1], 32", "s_load_dwordx2 s[12:13], s[0:1], 40",
      "s_load_dwordx4 s[8:11], s[0:1], 8", "s_load_dwordx2 s[6:7], s[0:1], 24", "s_setprio 2")
    def issue(p):
        a("s_lshl_b32 s38, s36, 13", "s_add_u32 m0, s47, s38", "s_lshl_b32 s38, s36, 7", "s_mov_b64 exec, s[48:49]",
          "buffer_load_dwordx4 v40, s[24:27], s38 offen lds", "buffer_load_dwordx4 v41, s[24:27], s38 offen offset:1024 lds",
          f"s_add_u32 m0, s37, {(p % 7) * 9216}", "s_mul_i32 s38, s36, 73728", "s_mov_b64 exec, -1",
          "buffer_load_dwordx4 v42, s[28:31], s38 offen lds", "buffer_load_dwordx4 v43, s[28:31], s38 offen offset:1024 lds")
        if p < 8: next_chunk(a, "s36")
    stream_positions(a, issue, 4)
    a("s_setprio 3")
    a.stamp(1)
    KR, VR_, WR, W8, KU, VU, XV, CH = 28, 40, 8, 12, 20, 48, 50, 56
    a.srd(24, 8, 0, 2359296); a.srd(28, 10, 0, 2359296); a.srd(32, 6, 0, 4608); a.srd(44, 4, WS_FP, 9 * 2048)
    a("s_mul_i32 s21, s3, 36", "s_add_u32 s21, s21, s19", "s_mov_b32 s43, 4")
    a("s_lshl_b32 s36, s18, 5", f"s_sub_u32 s36, {SCR_B + 112}, s36", "v_mul_u32_u24 v64, 288, v1", "v_lshlrev_b32 v65, 4, v3", "v_sub_u32 v64, v64, v65", "v_add_u32 v64, s36, v64",
      "s_mul_i32 s36, s18, 2304", f"s_add_u32 s36, s36, {SCR_B}", "v_lshrrev_b32 v66, 3, v2", "v_mul_u32_u24 v65, 144, v66", "v_and_b32 v67, 7, v2", "v_lshl_add_u32 v65, v67, 4, v65",
      "v_add_u32 v65, s36, v65", "v_lshlrev_b32 v66, 12, v66", "v_lshl_add_u32 v66, v67, 4, v66", "s_lshl_b32 s36, s18, 16", "v_add_u32 v66, s36, v66")
    a.nonce()
    a.lwait(M_KVPROG, E("PREPKV", 2), slp=2)
    a.label("L_PREP")
    a("s_lshr_b32 s22, s21, 5", "s_and_b32 s23, s21, 31")
    a("s_lshl_b32 s36, s23, 2", "s_add_u32 s36, s36, s18", "s_lshl_b32 s38, s36, 4", f"s_mul_i32 s36, s36, {16*1152}", "s_lshl_b32 s37, s22, 7", "s_add_u32 s36, s36, s37",
      f"v_mul_u32_u24 v5, {8*1152}, v3", "v_lshl_add_u32 v5, v1, 2, v5", "v_add_u32 v5, s36, v5", f"v_subrev_u32 v6, {3*1152}, v5",
      "s_lshl_b32 s37, s22, 9", "v_lshlrev_b32 v7, 4, v1", "s_movk_i32 s36, 4608")
    a(f"buffer_load_dwordx4 {vr(WR,4)}, v7, s[32:35], s37 offen")
    for i in range(3): a(f"buffer_load_dword v{KR+i}, v6, s[24:27], 0 offen offset:{1152*i}")
    for i in range(8):
        so = "s36" if i >= 4 else "0"
        a(f"buffer_load_dword v{KR+3+i}, v5, s[24:27], {so} offen offset:{1152*(i%4)}", f"buffer_load_dword v{VR_+i}, v5, s[28:31], {so} offen offset:{1152*(i%4)}")
    a("s_cmp_lg_u32 s43, 4", "s_cbranch_scc1 L_NOPF2", "s_cmp_lt_u32 s19, 28", "s_cbranch_scc1 L_NOPF2")
    a("s_add_u32 s36, s21, 4", "s_lshr_b32 s37, s36, 5", "s_and_b32 s36, s36, 31", f"s_mul_i32 s36, s36, {64*1152}", "s_lshl_b32 s37, s37, 7", "s_add_u32 s36, s36, s37",
      "v_mul_u32_u24 v68, 1152, v2", "s_cmp_ge_u32 s18, 2", "s_cbranch_scc1 L_NOPF2", "s_cmp_eq_u32 s18, 1", "s_cbranch_scc1 L_PF2V",
      "buffer_load_dword v69, v68, s[24:27], s36 offen", "s_branch L_NOPF2")
    a.label("L_PF2V")
    a("buffer_load_dword v69, v68, s[28:31], s36 offen")
    a.label("L_NOPF2")
    a("s_lshl_b32 s36, s22, 18", "s_lshl_b32 s37, s23, 7", f"s_sub_u32 s37, {3968 + WS_XI}, s37", "s_add_u32 s36, s36, s37")
    a.srd(52, 4, "s36", 63 * 4096 + 128)
    a("s_lshl_b32 s36, s22, 11", "s_add_u32 s38, s38, s36")
    a("s_waitcnt vmcnt(0)", "s_mov_b32 s36, 0xffff0000")
    for j in range(4):
        for e in range(2):
            src = WR + 2 * e + (j >> 1)
            a(f"v_lshlrev_b32 v{W8+2*j+e}, 16, v{src}" if j % 2 == 0 else f"v_and_b32 v{W8+2*j+e}, s36, v{src}")
    def unpack(dst, src): a(f"v_lshlrev_b32 v{dst}, 16, v{src}", f"v_and_b32 v{dst+1}, s36, v{src}")
    for i in range(3): unpack(KU + 2 * (i % 4), KR + i)
    for tau in range(8):
        ki = tau + 3
        unpack(KU + 2 * (ki % 4), KR + ki); unpack(VU, VR_ + tau)
        d = XV + 2 * (tau & 1); kk = lambda j: KU + 2 * ((ki - j) % 4)
        a(f"v_pk_mul_f32 {vr(d,2)}, {vr(kk(3),2)}, {vr(W8+6,2)}")
        for j in (2, 1, 0): a(f"v_pk_fma_f32 {vr(d,2)}, {vr(kk(j),2)}, {vr(W8+2*j,2)}, {vr(d,2)}")
        a(f"v_pk_mul_f32 {vr(d,2)}, {vr(d,2)}, {vr(VU,2)}")
        if tau & 1:
            for e in range(2): a(f"v_cvt_pk_bf16_f32 v{CH + 4*e + (7 - tau) // 2}, v{XV+2+e}, v{XV+e}")
    a("s_cmp_eq_u32 s43, 4", "s_cbranch_scc0 L_PREPR1")
    a.lwait(M_QDONE, 8, slp=1)
    a("v_lshlrev_b32 v75, 2, v2")
    a.srd(48, 4, WS_XC, 4096)
    a("s_getreg_b32 s36, hwreg(HW_REG_XCC_ID)", "s_lshl_b32 s37, s16, 3", "s_add_u32 s37, s37, s17", "s_lshl_b32 s37, s37, 4", "s_lshl_b32 s40, s18, 2", "s_add_u32 s37, s37, s40",
      "v_mov_b32 v76, s36", "s_mov_b64 exec, 1", "buffer_store_dword v76, v75, s[48:51], s37 offen sc1", "s_mov_b64 exec, -1")
    a("s_branch L_PREPW")
    a.label("L_PREPR1")
    a.lwait(M_SR, 4, slp=1)
    a.label("L_PREPW")
    a(f"ds_write_b128 v64, {vr(CH,4)}", f"ds_write_b128 v64, {vr(CH+4,4)} offset:144")
    a.arrive(M_SJ)
    a.lwait(M_SJ, "s43", slp=1)
    a(f"ds_read_b128 {vr(CH,4)}, v65", f"ds_read_b128 {vr(CH+4,4)}, v65 offset:1152", "s_mov_b32 s36, 32768", "s_waitcnt lgkmcnt(0)")
    a(f"buffer_store_dwordx4 {vr(CH,4)}, v66, s[52:55], 0 offen sc1", f"buffer_store_dwordx4 {vr(CH+4,4)}, v66, s[52:55], s36 offen sc1")
    a.arrive(M_SR)
    a("s_cmp_lg_u32 s43, 4", "s_cbranch_scc1 L_PREPD", "s_mov_b32 s39, s38", "s_cmp_lt_u32 s19, 28", "s_cbranch_scc1 L_PREPD", "s_mov_b32 s43, 8", "s_add_u32 s21, s21, 4", "s_branch L_PREP")
    a.label("L_PREPD")
    a.flag("s38", 44)
    a("s_mov_b64 exec, 1", f"buffer_store_dword v{VT}, v{VT-3}, s[44:47], s39 offen sc1", "s_mov_b64 exec, -1")
    a.arrive(M_PREP)
    a.stamp(2)
    a("s_lshl_b32 s21, s18, 5", "s_add_u32 s21, s21, s19", "s_cmp_ge_u32 s21, 108", "s_cbranch_scc1 L_CONVNONE")
    if NOCONV: a("s_branch L_CONVNONE")
    a("s_sub_u32 s22, s21, 72", "s_lshl_b32 s22, s22, 1", "s_cmp_ge_u32 s21, 72", "s_cselect_b32 s21, s22, s21", "s_cselect_b32 s57, 1, 0",
      "s_mul_i32 s22, s3, 72", "s_add_u32 s21, s21, s22", "s_lshr_b32 s22, s21, 6", "s_and_b32 s23, s21, 63")
    a("v_lshrrev_b32 v4, 3, v1", "v_lshlrev_b32 v4, 9, v4", "v_and_b32 v5, 7, v1", "v_lshl_add_u32 v4, v5, 1, v4", "v_lshl_add_u32 v4, v3, 4, v4",
      "s_lshl_b32 s36, s57, 11", "s_add_u32 s36, s36, 18", "v_add_u32 v4, s36, v4", "v_subrev_u32 v5, 32, v4")
    a("v_sub_u32 v6, 31, v1", "v_add_u32 v6, v6, v3", "v_lshlrev_b32 v6, 4, v6", "v_lshlrev_b32 v7, 4, v2",
      "s_mul_i32 s43, s18, 4608", "v_add_u32 v6, s43, v6")
    a("s_lshl_b32 s36, s21, 12", f"s_add_u32 s38, s36, {WS_XI}", "s_lshl_b32 s39, s22, 11", f"s_add_u32 s39, s39, {WS_FY}")
    a.srd(44, 14, "s36", 4096); a.srd(32, 4, "s38", 8192); a.srd(24, 4, "s39", 2048); a.srd(52, 4, WS_RDY, 32768); a.srd(48, 12, 0, 1152)
    a("s_mul_i32 s36, s21, 6144", f"s_add_u32 s36, s36, {WS_Y}")
    a.srd(28, 4, "s36", 12288)
    AF, AC, BR, D = 8, 72, 116, CONVD
    X5 = AC + 28
    def aload(ph, base1):
        r, o = (112, 32 * (ph - 1)) if base1 else (113, 32 * ph)
        a(f"buffer_load_dwordx4 {vr(AF+4*ph,4)}, v{r}, s[44:47], 0 offen offset:{o}", f"buffer_load_dword v{X5x(ph)}, v{r}, s[44:47], 0 offen offset:{o+16}")
    X5x = lambda ph: (X5 + ph) if ph < 12 else (BR + 4 + ph - 12)
    def afix(p0):
        for ph in range(p0, 16):
            for k in range(4): a(f"v_alignbit_b32 v{AF+4*ph+k}, v{AF+4*ph+k+1 if k < 3 else X5x(ph)}, v{AF+4*ph+k}, v114")
    def aloads(special):
        a("v_and_b32 v112, -4, v4", "v_and_b32 v113, -4, v5", "v_and_b32 v114, 2, v4", "v_lshlrev_b32 v114, 3, v114")
        for ph in range(1, 16): aload(ph, True)
        if not special:
            aload(0, False)
            a("s_waitcnt vmcnt(0)"); afix(0)
            return
        for k in range(8): a(f"v_add_u32 v{AC+k}, {2*k}, v5", f"buffer_load_ushort v{AC+8+k}, v{AC+k}, s[44:47], 0 offen")
        a("s_lshl_b32 s36, s21, 1", f"v_mov_b32 v{AC+16}, 0", f"buffer_load_ushort v{AC+17}, v{AC+16}, s[48:51], s36 offen", f"buffer_load_ushort v{AC+18}, v{AC+16}, s[44:47], 0 offen",
          "s_waitcnt vmcnt(0)", f"v_lshlrev_b32 v{AC+17}, 16, v{AC+17}", f"v_lshlrev_b32 v{AC+18}, 16, v{AC+18}", f"v_add_f32 v{AC+17}, v{AC+17}, v{AC+18}",
          f"v_cvt_pk_bf16_f32 v{AC+17}, v{AC+17}, 0")
        for k in range(8): a(f"v_cmp_eq_u32 vcc, 0, v{AC+k}", "s_nop 1", f"v_cndmask_b32 v{AC+8+k}, v{AC+8+k}, v{AC+17}, vcc")
        for k in range(4): a(f"v_lshl_or_b32 v{AF+k}, v{AC+9+2*k}, 16, v{AC+8+2*k}")
        afix(1)
    def zero(n):
        for k in range(n): a(f"v_mov_b32 v{AC+k}, 0")
    def run(nq, reload_a=False):
        seq = [(g, ph) for g in reversed(range(nq)) for ph in range(16)]
        def bload(i):
            g, ph = seq[i]
            a(f"ds_read_b128 {vr(BR + 4 * (i % D), 4)}, v6 offset:{32 * ph + (nq - 1 - g) * 512}")
        for i in range(D): bload(i)
        for i, (g, ph) in enumerate(seq):
            a(f"s_waitcnt lgkmcnt({min(D - 1, len(seq) - 1 - i)})")
            if i and i % 16 == 0: a.nop(8)
            if len(seq) - i == E("CBOOST", 0) // (2 if nq == 4 else 1): a("s_setprio 3")
            a(mfma(AC + 4 * g, AF + 4 * ph, BR + 4 * (i % D)))
            if i + D < len(seq): bload(i + D)
            if reload_a and g == 0 and ph < 12: aload(ph, False)
        if reload_a:
            for ph in range(12, 16): aload(ph, False)
        a.nop(12)
    def ystore(npiece, soff):
        a("s_setprio 3")
        for k in range(4 * npiece): a(f"v_cvt_pk_bf16_f32 v{AC+k}, v{AC+2*k}, v{AC+2*k+1}")
        for k in range(npiece): a(f"buffer_store_dwordx4 {vr(AC+4*k,4)}, v7, s[28:31], {soff} offen offset:{1024*k} sc1")
    def ready(isq):
        a("s_lshl_b32 s37, s2, 7", "s_lshl_b32 s38, s22, 2", "s_add_u32 s37, s37, s38")
        a.lwait(M_PASS2, 8, slp=8)
        a.gpoll(7, 52, 6, nl=1, soff="s37")
        a("s_mov_b32 m0, s43", "s_movk_i32 s37, 6144", "s_mov_b32 s38, 0x100000")
        for k in range(4): a(f"buffer_load_dwordx4 v7, s[32:35], {'s37' if isq and k < 2 else '0'} offen offset:{1024*k} sc1 lds")
        a("s_add_u32 m0, s43, 4096", "s_mov_b32 exec_hi, 0", "buffer_load_dwordx4 v7, s[32:35], s38 offen lds", "s_mov_b32 exec_hi, -1", "s_waitcnt vmcnt(0)")
        a.stamp(3)
        a(f"s_setprio {E('CPRIO', 0)}")
    a.lwait(M_PREP, 4, slp=2)
    a("s_cmp_eq_u32 s57, 1", "s_cbranch_scc1 L_CONVQ")
    aloads(True); zero(32); ready(False); run(8)
    a.stamp(4)
    ystore(4, "0")
    a("s_lshl_b32 s38, s23, 4", "s_mov_b64 s[50:51], 1", "s_branch L_CONVOUT")
    a.label("L_CONVQ")
    aloads(False); zero(16); ready(True)
    a("s_mov_b32 s41, 0", "s_movk_i32 s42, 4096", "s_add_u32 s44, s44, 4096", "s_addc_u32 s45, s45, 0", "v_add_u32 v6, 2048, v6")
    a.label("L_CONVQ2")
    run(4, True)
    ystore(2, "s42")
    a("s_cmp_eq_u32 s41, 1", "s_cbranch_scc1 L_CONVQD")
    a("s_mov_b32 s41, 1", f"s_movk_i32 s42, {4096+6144}", "s_mov_b32 s46, 0", "v_subrev_u32 v6, 2048, v6", f"v_lshl_add_u32 v{BR}, v2, 3, s43", "s_waitcnt vmcnt(0)")
    afix(0); zero(16)
    a(f"ds_write_b64 v{BR}, {vr(AC,2)} offset:2048", "s_waitcnt lgkmcnt(0)", f"s_setprio {E('CPRIO', 0)}", "s_branch L_CONVQ2")
    a.label("L_CONVQD")
    a.stamp(4)
    a("s_lshl_b32 s38, s23, 4", "s_add_u32 s38, s38, 1024", "s_mov_b64 s[50:51], 3")
    a.label("L_CONVOUT")
    a(f"v_mov_b32 v{VM}, {MISC}", f"v_mov_b32 v{VONE}, 1")
    a.flag("s38", 24, "s[50:51]")
    a.stamp(5)
    a.label("L_CONVNONE")
    a.arrive(M_CONV)
    a("s_mul_i32 s36, s16, 73728", "s_mul_i32 s37, s18, 18432", "s_add_u32 s36, s36, s37", f"s_add_u32 s36, s36, {WS_O}", f"s_add_u32 s43, s37, {O_B}")
    a.srd(24, 4, "s36", 18432)
    a("s_lshl_b32 s36, s16, 10", "s_lshl_b32 s37, s18, 8", "s_add_u32 s36, s36, s37", f"s_add_u32 s36, s36, {WS_FO}")
    a.srd(28, 4, "s36", 256)
    a("v_lshlrev_b32 v4, 4, v2", "s_lshl_b32 s37, s18, 3", f"v_add_u32 v7, s37, v{VM}", "v_mov_b32 v10, 8")
    a("s_mov_b32 s47, 0xffff", "s_mov_b32 s46, 3", "s_lshr_b32 s37, s17, 1", "s_cmp_lg_u32 s37, s18", "s_cbranch_scc1 L_GM",
      "s_bitcmp1_b32 s17, 0", "s_cselect_b32 s47, 0xff, s47", "s_cselect_b32 s46, 1, 2", "s_cbranch_scc1 L_GM", "s_mov_b32 s47, 0xff00")
    a.label("L_GM")
    a.lwait(M_ADONE, 6, slp=4)
    a("s_mov_b32 exec_lo, s47", "s_mov_b32 exec_hi, 0", "buffer_load_dword v8, v4, s[28:31], 0 offen sc1", "s_mov_b64 exec, -1", "s_mov_b32 s62, 0")
    a.lwait(M_ADONE, 8, slp=1)
    if E("GST", 0): a.stamp(3)
    a.label("L_GL")
    a("s_waitcnt vmcnt(0)", "v_cmp_ne_u32 vcc, s61, v8", "s_add_u32 s62, s62, 1", "s_and_b32 s47, s47, vcc_lo", f"s_cmp_ge_u32 s62, {POLL_MAX}", "s_cselect_b32 s47, 0, s47",
      "s_mov_b32 s48, 0")
    for mm in range(2):
        a(f"s_bitcmp1_b32 s46, {mm}", f"s_cbranch_scc0 L_GW{mm}", f"s_and_b32 s37, s47, {0xff << (8*mm)}", f"s_cbranch_scc1 L_GW{mm}")
        for b in range(9):
            if b % 4 == 0: a(f"s_add_u32 m0, s43, {9216*mm + 1024*b}", f"s_movk_i32 s37, {9216*mm + 1024*b}")
            a(f"buffer_load_dwordx4 v4, s[24:27], s37 offen offset:{1024*(b%4)} sc1 lds")
        a(f"s_bitset0_b32 s46, {mm}", f"s_bitset1_b32 s48, {mm}")
        a.label(f"L_GW{mm}")
    a("s_cmp_eq_u32 s48, 0", "s_cbranch_scc1 L_GN")
    a("s_cmp_lg_u32 s48, 3", "s_cbranch_scc1 L_G1", "s_waitcnt vmcnt(9)", "s_mov_b64 exec, 1", f"ds_add_u32 v7, v10 offset:{M_OC}", "s_mov_b32 s48, 2")
    a.label("L_G1")
    a("s_sub_u32 s48, s48, 1", "s_lshl_b32 s48, s48, 2", "s_mov_b64 exec, 1", "v_add_u32 v9, s48, v7", "s_waitcnt vmcnt(0)", f"ds_add_u32 v9, v10 offset:{M_OC}", "s_mov_b64 exec, -1")
    a("s_cmp_eq_u32 s46, 0", "s_cbranch_scc1 L_GD", "s_branch L_GP")
    a.label("L_GN")
    a(f"s_sleep {E('GSLP', 1)}")
    a.label("L_GP")
    a("s_mov_b32 exec_lo, s47", "s_mov_b32 exec_hi, 0", "buffer_load_dword v8, v4, s[28:31], 0 offen sc1", "s_mov_b64 exec, -1")
    if E("GST", 0): a.stamp(4)
    a("s_branch L_GL")
    a.label("L_GD")
    a.stamp(6)
    if E("GST", 0): a("s_waitcnt lgkmcnt(0)", "s_add_u32 s84, s64, s62")
    a.end("l")

def gen_loader(a):
    a.label("L_LOADER")
    a("s_memrealtime s[36:37]", "s_load_dwordx2 s[44:45], s[0:1], 80")
    a("v_mov_b32 v4, 0", f"v_lshl_add_u32 v5, v2, 2, v{VM}", "ds_write_b32 v5, v4", "v_lshlrev_b32 v6, 7, v2")
    a("s_movk_i32 s21, 7282", "v_add_u32 v10, 512, v2")
    piece_decode(a, 10, 11, 12, 13, 14, "s21")
    a("v_lshl_add_u32 v13, v11, 4, v13", "v_mul_u32_u24 v13, 1152, v13", "v_add_u32 v42, v13, v12")
    a("s_mul_i32 s21, s17, 144", f"s_sub_u32 s22, {576*1152}, s21")
    a("s_waitcnt lgkmcnt(0)")
    a.srd(24, 4, 0, 256)
    a("s_cmp_lg_u32 s2, 0", "s_cbranch_scc1 L_NONONCE")
    a("s_or_b32 s36, s36, 1", "v_mov_b32 v7, s36", "s_mov_b64 exec, 3", "buffer_store_dword v7, v6, s[24:27], 0 offen sc1", "s_mov_b64 exec, -1")
    a.label("L_NONONCE")
    a("s_mov_b32 s4, s6", "s_mov_b32 s5, s7")
    a.srd(48, 10, "s21", "s22")
    a.srd(40, 44, "s21", "s22")
    rot(a, "s36", "s37")
    a("s_barrier")
    def issue(p):
        a(f"s_mov_b32 m0, {W_B + (p % 7) * 9216 + 8192}", "s_mul_i32 s38, s36, 73728", "buffer_load_dwordx4 v42, s[48:51], s38 offen lds")
        if p < 8: next_chunk(a, "s36")
    for p in range(7): issue(p)
    a("v_lshlrev_b32 v8, 4, v2", "s_and_b32 s21, s2, 1", "s_lshl_b32 s21, s21, 7", "v_mov_b32 v6, s21")
    a("buffer_load_dword v7, v6, s[24:27], 0 offen sc1")
    a.srd(28, 4, WS_KV, KV_BYTES)
    a(f"s_and_b32 s21, s2, {NREP - 1}", "s_lshl_b32 s21, s21, 11", f"s_add_u32 s21, s21, {WS_FKV}")
    a.srd(32, 4, "s21", 2048)
    for p in range(7):
        a(f"s_waitcnt vmcnt({7 - p})"); a.arrive(M_CW + 4 * p)
    a("s_mov_b32 s62, 0")
    a.label("L_NP")
    a("s_add_u32 s62, s62, 1", "s_waitcnt vmcnt(0)", "v_readfirstlane_b32 s61, v7",
      "s_cmp_lg_u32 s61, 0", "s_cbranch_scc1 L_NPD", "s_mov_b32 s61, 1", f"s_cmp_ge_u32 s62, {POLL_MAX}", "s_cbranch_scc1 L_NPD", "s_sleep 4",
      "buffer_load_dword v7, v6, s[24:27], 0 offen sc1", "s_branch L_NP")
    a.label("L_NPD")
    a.lset(M_NONCE, "s61")
    a.stamp(1)
    for p in (7, 8):
        a.lwait(M_D0 + 4 * (p - 7), 8, slp=1); issue(p)
    for p in (7, 8):
        a(f"s_waitcnt vmcnt({8 - p})"); a.arrive(M_CW + 4 * p)
    if E("POLLAT", 9) <= 8: a.lwait(M_CW + 4 * E("POLLAT", 9), 5, slp=1)
    else: a.lwait(M_QDONE, E("POLLQ", 1), slp=1)
    a("s_mov_b32 s62, 0", "s_mov_b64 s[22:23], -1", "s_mov_b64 s[38:39], -1")
    a.label("L_KP")
    a("s_mov_b64 exec, s[22:23]", "s_cbranch_execz L_KP1", "buffer_load_dwordx2 v[14:15], v8, s[32:35], 0 offen sc1")
    a.label("L_KP1")
    a("s_mov_b64 exec, s[38:39]", "s_cbranch_execz L_KP2", "buffer_load_dwordx2 v[16:17], v8, s[32:35], 0 offen offset:1024 sc1")
    a.label("L_KP2")
    a("s_mov_b64 exec, -1", "s_add_u32 s62, s62, 1",
      "s_waitcnt vmcnt(0)", "v_cmp_ne_u32 s[22:23], s61, v14", "v_cmp_ne_u32 s[38:39], s61, v16", "s_or_b64 vcc, s[22:23], s[38:39]", "s_cmp_eq_u64 vcc, 0",
      "s_cbranch_scc1 L_KPD", f"s_cmp_ge_u32 s62, {POLL_MAX}", "s_cbranch_scc1 L_KPD", "s_sleep 2", "s_branch L_KP")
    a.label("L_KPD")
    a.stamp(2)
    pos = [0]
    def kvdma(n):
        for _ in range(n):
            i = pos[0]
            if i % 4 == 0: a(f"s_mov_b32 m0, {i * 1024}", "s_nop 0")
            a(f"buffer_load_dwordx4 v8, s[28:31], m0 offen offset:{(i % 4) * 1024} sc1 lds")
            pos[0] += 1
    kvdma(10)
    a("v_max_u32 v15, v15, v17")
    for sh in (8, 4, 2, 1): a("s_nop 1", f"v_max_u32_dpp v15, v15, v15 row_ror:{sh} row_mask:0xf bank_mask:0xf")
    a("s_nop 0", "v_readlane_b32 s36, v15, 0", "v_readlane_b32 s37, v15, 16", "v_readlane_b32 s38, v15, 32", "v_readlane_b32 s39, v15, 48",
      "s_max_u32 s36, s36, s37", "s_max_u32 s38, s38, s39", "s_max_u32 s36, s36, s38")
    a.lset(M_KMAX, "s36")
    kvdma(12)
    a("s_waitcnt vmcnt(12)"); a.lset(M_KVPROG, 2)
    a.stamp(3)
    a("s_waitcnt vmcnt(3)"); a.lset(M_KVPROG, 4)
    a.lwait(M_QDONE, 8, slp=0)
    KW = E("KVWIN", 8)
    done = 4
    while pos[0] < 148:
        kvdma(min(4 - pos[0] % 4, 148 - pos[0]))
        w = KW if pos[0] < 148 else 0
        a(f"s_waitcnt vmcnt({w})")
        rec = 32 if w == 0 else (pos[0] - w) * 1024 // REC
        if rec >= 32 or rec - done >= 2 and (rec <= 10 or rec - done >= 4):
            a.lset(M_KVPROG, rec); done = rec
    a.stamp(4)
    a("s_movk_i32 s21, 7282")
    for i in range(9):
        a(f"v_add_u32 v10, {64*i}, v2")
        piece_decode(a, 10, 11, 14, 15, 16, "s21")
        if i % 4: a(f"v_subrev_u32 v14, {(i % 4) * 1024}, v14")
        a("v_mul_u32_u24 v16, 18, v11", "v_add_u32 v16, v16, v15", "v_mul_u32_u24 v16, 1152, v16", f"v_add_u32 v{20+i}, v16, v14")
        a("v_lshrrev_b32 v16, 1, v15", "v_lshl_add_u32 v16, v11, 3, v16", "v_mul_u32_u24 v16, 18, v16", "v_and_b32 v15, 1, v15", "v_add3_u32 v16, v16, v15, 16",
          "v_mul_u32_u24 v16, 1152, v16", f"v_add_u32 v{30+i}, v16, v14")
    def woblocks(b0, b1, tag):
        a(f"s_mov_b32 m0, {b0*9216}", f"s_mov_b32 s21, {b0*72*1152}")
        a.label(f"L_WO{tag}")
        for i in range(9):
            a(f"buffer_load_dwordx4 v{20+i}, s[40:43], s21 offen offset:{(i % 4) * 1024} lds")
            if i in (3, 7): a("s_add_u32 m0, m0, 4096", "s_nop 0")
        a("s_add_u32 m0, m0, 1024", f"s_add_u32 s21, s21, {72*1152}", "s_waitcnt vmcnt(9)", f"s_cmp_lt_u32 s21, {b1*72*1152}", f"s_cbranch_scc1 L_WO{tag}")
    a.lwait(M_PASS3, 8, slp=32)
    a.srd(52, 4, WS_RDY, 32768)
    a("s_mul_i32 s21, s3, 36", "s_lshl_b32 s22, s20, 3", "s_add_u32 s21, s21, s22", "v_mul_u32_u24 v10, 7, v2", "v_add_u32 v10, s21, v10", "v_lshrrev_b32 v10, 5, v10",
      "v_lshlrev_b32 v10, 2, v10", "s_lshl_b32 s21, s2, 7")
    a.gpoll(10, 52, 8, nl=2, soff="s21")
    a.srd(52, 4, WS_XC, 4096)
    a("s_lshl_b32 s21, s16, 7", "s_getreg_b32 s22, hwreg(HW_REG_XCC_ID)", "s_mov_b64 exec, 0xff", "buffer_load_dword v10, v8, s[52:55], s21 offen sc1", "s_waitcnt vmcnt(0)",
      "v_cmp_ne_u32 vcc, s22, v10", "s_mov_b64 exec, -1", "s_cmp_eq_u64 vcc, 0", f"s_cselect_b32 s21, {E('OFAST', 2)}, 1")
    a.lset(M_PZ, "s21")
    woblocks(2, 5, 0)
    a("v_mul_u32_u24 v10, 1152, v2", "s_mov_b32 s21, 0")
    for i in range(3):
        a(f"buffer_load_dword v12, v10, s[40:43], s21 offen", f"buffer_load_dword v13, v10, s[40:43], s21 offen offset:128", "s_add_u32 s21, s21, 73728" if i else "s_add_u32 s21, s21, 18432")
    a.lwait(M_PASS, 8, slp=32)
    a.stamp(5)
    woblocks(5, 8, 1)
    for i in range(9):
        a(f"buffer_load_dwordx4 v{30+i}, s[40:43], 0 offen offset:{(i % 4) * 1024} lds")
        if i in (3, 7): a("s_add_u32 m0, m0, 4096", "s_nop 0")
    a.lwait(M_CONV, 4, slp=8)
    woblocks(0, 2, 2)
    a("s_waitcnt vmcnt(0)"); a.lset(M_WO, 1)
    if E("WBL2", 0):
        a(f"s_cmp_ge_u32 s17, {E('WBL2', 0)}", "s_cbranch_scc1 L_NOWB")
        a("v_and_b32 v10, 7, v2", f"v_lshl_add_u32 v10, v10, 2, v{VM}")
        a.label("L_WBW")
        a("s_sleep 2", f"ds_read_b32 v11, v10 offset:{M_OC}", "s_waitcnt lgkmcnt(0)", "v_cmp_gt_u32 vcc, 8, v11", "s_cmp_lg_u64 vcc, 0", "s_cbranch_scc1 L_WBW")
        a("buffer_wbl2 sc1")
        a.label("L_NOWB")
    a.stamp(6)
    a.end("d")

def gen(a):
    import gen4a
    kernel_head(a, NAME + "_kernel")
    a("s_cmp_ge_u32 s2, 256", "s_cbranch_scc1 L_END")
    a.stamp(0)
    a("s_load_dwordx4 s[8:11], s[0:1], 48", "s_load_dwordx4 s[12:15], s[0:1], 64", "s_load_dwordx4 s[4:7], s[0:1], 96")
    a("v_lshrrev_b32 v1, 6, v0", "v_and_b32 v2, 63, v0", "s_and_b32 s3, s2, 7", "v_readfirstlane_b32 s18, v1")
    a("s_lshr_b32 s19, s2, 3", "s_and_b32 s17, s19, 7", "s_lshr_b32 s20, s19, 3", "s_lshl_b32 s16, s3, 2", "s_add_u32 s16, s16, s20")
    a("v_and_b32 v1, 31, v2", "v_lshrrev_b32 v3, 5, v2", f"v_mov_b32 v{VM}, {MISC}", f"v_mov_b32 v{VONE}, 1")
    if E("CODEPF", 1):
        a("s_cmp_lg_u32 s18, 8", "s_cbranch_scc1 L_NOPF", "s_getpc_b64 s[36:37]")
        a.label("L_PC")
        a("v_lshl_add_u32 v10, v1, 3, s17", "v_lshlrev_b32 v10, 7, v10", f"v_min_u32 v10, L_CODE_END - L_PC - 4, v10",
          "v_mov_b32 v11, s37", "v_add_co_u32 v10, vcc, s36, v10", "s_mov_b32 exec_hi, 0", "s_nop 0",
          "v_addc_co_u32 v11, vcc, 0, v11, vcc", "global_load_dword v120, v[10:11], off", "s_mov_b32 exec_hi, -1")
        a.label("L_NOPF")
    a("s_cmp_ge_u32 s18, 8", "s_cbranch_scc1 L_ATT", "s_setprio 3", "s_cmp_ge_u32 s18, 4", "s_cbranch_scc1 L_LW", "s_cmp_eq_u32 s18, 3", "s_cbranch_scc1 L_LOADER")
    gen_h(a); gen_l(a); gen_loader(a); gen4a.gen_a(a)
    a.label("L_END")
    a("s_endpgm")
    a.label("L_CODE_END")

def build():
    hdr = open("cdna_kernels/" + NAME + ".s.ref").read().split("; Override launch")[0]
    a = F()
    L = [hdr.rstrip(), f"; @launch grid=(256,1,1) block=(1024,1,1) lds={LDS_BYTES}", '.amdgcn_target "amdgcn-amd-amdhsa--gfx950"', ".text"]
    gen(a)
    L += [("  " + l if not l.endswith(":") and not l.startswith(".") else l) for l in a.L]
    L.append('.section .rodata,"a"')
    L += kd(NAME + "_kernel", NVGPR, 100)
    return "\n".join(L) + "\n"

if __name__ == "__main__":
    out = sys.argv[1] if len(sys.argv) > 1 else "cdna_kernels/" + NAME + ".s"
    open(out, "w").write(build())
    print("wrote", out)
```
